```python
import torch

def _softmax(x, axis=-1):
    return torch.softmax(x, dim=axis)
def _gelu(x):
    return torch.nn.functional.gelu(x, approximate="tanh")
def _silu(x):
    return torch.nn.functional.silu(x)
def _sigmoid(x):
    return torch.sigmoid(x)
def _layernorm(x, axis=-1, eps=1e-5):
    m = x.mean(dim=axis, keepdim=True)
    v = x.var(dim=axis, keepdim=True, unbiased=False)
    return (x - m) / torch.sqrt(v + eps)
def _scatter_add(tgt, idx, src, axis=0):
    return tgt.clone().index_add_(axis, idx, src)
def _segment_sum(src, seg, n):
    out = torch.zeros((n,) + src.shape[1:], dtype=src.dtype)
    return out.index_add_(0, seg, src)
def _pad(x, pw):
    flat = tuple(v for pair in reversed(pw) for v in pair)
    return torch.nn.functional.pad(x, flat)

kernel_name = 'concat_heads__ssm_conv_h3__ssm_conv_s5__prompt'

def setup_inputs():

    _w = (lambda a: (lambda t: t.to(torch.bfloat16) if t.is_floating_point() else t)(torch.as_tensor(a)))
    def _A_setup():
        B, S, D = 1, 2048, 1024
        ks = 4
        return {
            "q": _w((lambda *s: torch.randn(*s, dtype=torch.bfloat16) * 0.05)(B, S, D)),
            "k": _w((lambda *s: torch.randn(*s, dtype=torch.bfloat16) * 0.2)(B, S, D)),
            "v": _w((lambda *s: torch.randn(*s, dtype=torch.bfloat16) * 0.2)(B, S, D)),
            "shift_k": _w((lambda *s: torch.randn(*s, dtype=torch.bfloat16) * 0.2)(D, ks) * 0.5),
            "ssm_k": _w((lambda *s: torch.randn(*s, dtype=torch.bfloat16) * 0.8)(D, S) * (1.0 / S ** 0.5)),
            "ssm_D": _w((lambda *s: torch.randn(*s, dtype=torch.bfloat16) * 0.2)(D)),
        }
    _A_in = _A_setup()

    def _B_setup():
        B, S, D = 1, 2048, 1024
        P = D
        Lambda_re = -0.5 * (lambda _x: torch.exp(torch.as_tensor(_x)))((lambda *s: torch.randn(*s, dtype=torch.bfloat16) * 0.2)(P))
        Lambda_im = (lambda *s: torch.randn(*s, dtype=torch.bfloat16) * 0.4)(P) * 1.0
        B_re = (lambda *s: torch.randn(*s, dtype=torch.bfloat16) * 0.2)(P, D) * (D ** -0.5)
        B_im = (lambda *s: torch.randn(*s, dtype=torch.bfloat16) * 0.2)(P, D) * (D ** -0.5)
        C_re = (lambda *s: torch.randn(*s, dtype=torch.bfloat16) * 0.2)(D, P) * (P ** -0.5)
        C_im = (lambda *s: torch.randn(*s, dtype=torch.bfloat16) * 0.2)(D, P) * (P ** -0.5)
        log_dt = (lambda *s: torch.randn(*s, dtype=torch.bfloat16) * 0.2)(P) * 0.3 - 2.0
        Dskip = (lambda *s: torch.randn(*s, dtype=torch.bfloat16) * 0.05)(D)
        return {
            "x": _w((lambda *s: torch.randn(*s, dtype=torch.bfloat16) * 0.05)(B, S, D)),
            "Lambda_re": _w(Lambda_re),
            "Lambda_im": _w(Lambda_im),
            "B_re": _w(B_re),
            "B_im": _w(B_im),
            "C_re": _w(C_re),
            "C_im": _w(C_im),
            "log_dt": _w(log_dt),
            "Dskip": _w(Dskip),
        }
    _B_in = _B_setup()

    return {
        "A_q": _A_in["q"],
        "A_k": _A_in["k"],
        "A_v": _A_in["v"],
        "A_shift_k": _A_in["shift_k"],
        "A_ssm_k": _A_in["ssm_k"],
        "A_ssm_D": _A_in["ssm_D"],
        "B_x": _B_in["x"],
        "B_Lambda_re": _B_in["Lambda_re"],
        "B_Lambda_im": _B_in["Lambda_im"],
        "B_B_re": _B_in["B_re"],
        "B_B_im": _B_in["B_im"],
        "B_C_re": _B_in["C_re"],
        "B_C_im": _B_in["C_im"],
        "B_log_dt": _B_in["log_dt"],
        "B_Dskip": _B_in["Dskip"],
    }

def reference(A_q, A_k, A_v, A_shift_k, A_ssm_k, A_ssm_D, B_x, B_Lambda_re, B_Lambda_im, B_B_re, B_B_im, B_C_re, B_C_im, B_log_dt, B_Dskip):
    def _A_ref(q, k, v, shift_k, ssm_k, ssm_D):
        B, S, D = q.shape
        ks = shift_k.shape[-1]
        k_pad = _pad(k, ((0, 0), (ks - 1, 0), (0, 0)))
        k_shift = torch.zeros_like(k)
        for t in range(ks):
            k_shift = k_shift + k_pad[:, t:t + S, :] * shift_k[:, ks - 1 - t][None, None, :]
        kv = k_shift * v
        L = 2 * S
        kv_pad = _pad(kv, ((0, 0), (0, S), (0, 0)))
        kf_pad = _pad(ssm_k, ((0, 0), (0, S)))
        kv_f = (lambda x, axes=(-2,-1): torch.fft.rfft2(x.float(), dim=axes))(kv_pad[:, None, :, :], axes=(1, 2))
        kf_f = (lambda x, axes=(-2,-1): torch.fft.rfft2(x.float(), dim=axes))(kf_pad[:, None, :], axes=(1, 2))
        kf_f = (lambda x, *d: x.permute(*d))(kf_f, 1, 2, 0)
        y_f = kv_f * kf_f[None, :, :, :]
        y = (lambda x, s, axes=(-2,-1): torch.fft.irfft2(x, s=s, dim=axes).to(torch.bfloat16))(y_f, (1, L), axes=(1, 2))[:, 0, :S, :]
        y = y + kv * ssm_D[None, None, :]
        return q * y

    def _B_ref(x, Lambda_re, Lambda_im, B_re, B_im, C_re, C_im, log_dt, Dskip):
        Bsz, L, H = x.shape
        Lam = Lambda_re + 1j * Lambda_im
        Bmat = B_re + 1j * B_im
        Cmat = C_re + 1j * C_im
        dt = torch.exp(log_dt)
        Lam_bar = torch.exp(dt * Lam)
        B_bar = ((Lam_bar - 1.0) / Lam)[:, None] * Bmat
        Bu = torch.einsum("bld,pd->blp", x + 0j, B_bar)
        h = torch.zeros_like(Bu[:, 0, :])
        hs = []
        for t in range(L):
            h = Lam_bar[None, :] * h + Bu[:, t, :]
            hs.append(h)
        hseq = torch.stack(hs, 1)
        y = 2.0 * torch.einsum("blp,dp->bld", hseq, Cmat).real + x * Dskip[None, None, :]
        return y

    a = _A_ref(A_q, A_k, A_v, A_shift_k, A_ssm_k, A_ssm_D)
    b = _B_ref(B_x, B_Lambda_re, B_Lambda_im, B_B_re, B_B_im, B_C_re, B_C_im, B_log_dt, B_Dskip)
    return torch.concatenate([a, b], axis=-1)
```

```python
import sys,re
def instrument(s, groups=None):
    lines = s.split("\n")
    launches = [l for l in lines if l.startswith("; @launch kernel=")]
    info = [re.match(r"; @launch kernel=(\w+) grid=\((\d+),1,1\) block=\((\d+)", l).groups() for l in launches]
    names = [n for n,_,_ in info]
    WS_DIAG = 200 << 20
    out = []
    cur = None
    for l in lines:
        m = re.match(r"^(\w+_kernel):", l)
        if m and m.group(1) in names:
            cur = names.index(m.group(1))
            out.append(l)
            out += """    s_memrealtime s[100:101]
    v_readfirstlane_b32 s96, v0
    s_mov_b32 s99, s2
    s_mov_b32 s98, s0
    s_mov_b32 s97, s1
    s_lshr_b32 s96, s96, 6
    s_waitcnt lgkmcnt(0)""".split("\n")
            continue
        if l.strip() == "s_endpgm" and cur is not None:
            k = cur
            out += f"""    s_waitcnt vmcnt(0) lgkmcnt(0)
    s_mov_b32 s0, s98
    s_mov_b32 s1, s97
    s_load_dwordx2 s[4:5], s[0:1], 136
    s_memrealtime s[6:7]
    s_mov_b64 exec, 1
    s_waitcnt lgkmcnt(0)
    s_add_u32 s8, s4, {WS_DIAG + k * 0x20000}
    s_addc_u32 s9, s5, 0
    s_mov_b32 s10, {int(info[k][1]) * 16 * 8}
    s_mov_b32 s11, 0x20000
    s_lshl_b32 s13, s99, 4
    s_add_u32 s13, s13, s96
    s_lshl_b32 s13, s13, 3
    v_mov_b32 v0, s13
    v_mov_b32 v2, s100
    v_mov_b32 v3, s6
    buffer_store_dwordx2 v[2:3], v0, s[8:11], 0 offen
    s_waitcnt vmcnt(0)
    s_endpgm""".split("\n")
            continue
        out.append(l)
    s = "\n".join(out)
    s = re.sub(r"\.amdhsa_next_free_sgpr \d+", ".amdhsa_next_free_sgpr 102", s)
    if groups is None:
        groups = [(k, 0, int(g), 0, int(b)//64) for k,(n,g,b) in enumerate(info)]
    body = """.p2align 8
.globl kdiag_kernel
.type kdiag_kernel,@function
kdiag_kernel:
    s_cmp_ge_u32 s2, 1
    s_cbranch_scc1 KD_done
    s_load_dwordx2 s[4:5], s[0:1], 136
    s_load_dwordx2 s[6:7], s[0:1], 128
    s_waitcnt lgkmcnt(0)
    s_mov_b32 s12, s6
    s_mov_b32 s13, s7
    s_mov_b32 s14, 256
    s_mov_b32 s15, 0x20000
"""
    for gi,(k,lo,hi,wlo,whi) in enumerate(groups):
        body += f"""    s_add_u32 s8, s4, {WS_DIAG + k * 0x20000}
    s_addc_u32 s9, s5, 0
    s_mov_b32 s10, 0x20000
    s_mov_b32 s11, 0x20000
    v_mov_b32 v4, -1
    v_mov_b32 v5, 0
    v_mov_b32 v6, -1
    v_mov_b32 v7, 0
    v_add_u32 v1, {lo}, v0
    v_lshlrev_b32 v1, 7, v1
    s_mov_b32 s16, {lo}
KD_l{gi}:
"""
        for w in range(wlo, whi):
            body += f"""    buffer_load_dwordx2 v[2:3], v1, s[8:11], 0 offen offset:{8*w}
    s_waitcnt vmcnt(0)
    v_min_u32 v4, v4, v2
    v_max_u32 v5, v5, v2
    v_min_u32 v6, v6, v3
    v_max_u32 v7, v7, v3
"""
        body += f"""    v_add_u32 v1, {64*128}, v1
    s_add_u32 s16, s16, 64
    s_cmp_lt_u32 s16, {hi}
    s_cbranch_scc1 KD_l{gi}
    v_not_b32 v4, v4
    v_not_b32 v6, v6
    v_mov_b32 v8, {16*gi}
    buffer_atomic_umax v4, v8, s[12:15], 0 offen
    buffer_atomic_umax v5, v8, s[12:15], 0 offen offset:4
    buffer_atomic_umax v6, v8, s[12:15], 0 offen offset:8
    buffer_atomic_umax v7, v8, s[12:15], 0 offen offset:12
    s_waitcnt vmcnt(0)
"""
    body += """    v_lshlrev_b32 v1, 2, v0
    v_mov_b32 v9, 0
    buffer_load_dword v2, v1, s[12:15], 0 offen sc0 sc1
    buffer_load_dword v3, v9, s[12:15], 0 offen sc0 sc1
    s_waitcnt vmcnt(0)
    v_not_b32 v3, v3
    v_not_b32 v4, v2
    v_and_b32 v5, 1, v0
    v_cmp_eq_u32 vcc, 0, v5
    s_nop 1
    v_cndmask_b32 v2, v2, v4, vcc
    v_sub_u32 v2, v2, v3
""" + f"""    v_cmp_gt_u32 vcc, {4*len(groups)}, v0
    s_and_saveexec_b64 s[20:21], vcc
    buffer_store_dword v2, v1, s[12:15], 0 offen
    s_waitcnt vmcnt(0)
KD_done:
    s_endpgm
"""
    desc = """.p2align 6
.amdhsa_kernel kdiag_kernel
  .amdhsa_next_free_vgpr 16
  .amdhsa_next_free_sgpr 32
  .amdhsa_accum_offset 16
  .amdhsa_group_segment_fixed_size 0
  .amdhsa_kernarg_size 144
  .amdhsa_user_sgpr_count 2
  .amdhsa_user_sgpr_kernarg_segment_ptr 1
  .amdhsa_system_sgpr_workgroup_id_x 1
.end_amdhsa_kernel
"""
    s = s.replace(launches[-1] + "\n", launches[-1] + "\n; @launch kernel=kdiag_kernel grid=(1,1,1) block=(64,1,1) lds=0\n")
    s = s.replace('.section .rodata,"a"\n', body + '.section .rodata,"a"\n' + desc)
    return s
if __name__ == "__main__":
    g = None
    if len(sys.argv) > 3:
        g = eval(sys.argv[3])
    open(sys.argv[2], "w").write(instrument(open(sys.argv[1]).read(), g))
```

```python
import sys,re
def instrument(s, groups=None, spin=None):
    lines = s.split("\n")
    launches = [l for l in lines if l.startswith("; @launch kernel=")]
    info = [re.match(r"; @launch kernel=(\w+) grid=\((\d+),1,1\) block=\((\d+)", l).groups() for l in launches]
    names = [n for n,_,_ in info]
    WS_DIAG = 200 << 20
    out = []
    cur = None
    for l in lines:
        m = re.match(r"^(\w+_kernel):", l)
        if m and m.group(1) in names:
            cur = names.index(m.group(1))
            out.append(l)
            out += """    s_memrealtime s[100:101]
    v_readfirstlane_b32 s96, v0
    s_mov_b32 s99, s2
    s_mov_b32 s98, s0
    s_mov_b32 s97, s1
    s_lshr_b32 s96, s96, 6
    s_waitcnt lgkmcnt(0)""".split("\n")
            continue
        if l.strip() == "s_endpgm" and cur is not None:
            k = cur
            out += f"""    s_waitcnt vmcnt(0) lgkmcnt(0)
    s_mov_b32 s0, s98
    s_mov_b32 s1, s97
    s_load_dwordx2 s[4:5], s[0:1], 136
    s_memrealtime s[6:7]
    s_mov_b64 exec, 1
    s_waitcnt lgkmcnt(0)
    s_add_u32 s8, s4, {WS_DIAG + k * 0x20000}
    s_addc_u32 s9, s5, 0
    s_mov_b32 s10, {int(info[k][1]) * 16 * 8}
    s_mov_b32 s11, 0x20000
    s_lshl_b32 s13, s99, 4
    s_add_u32 s13, s13, s96
    s_lshl_b32 s13, s13, 3
    v_mov_b32 v0, s13
    v_mov_b32 v2, s100
    v_mov_b32 v3, s6
    buffer_store_dwordx2 v[2:3], v0, s[8:11], 0 offen
    s_waitcnt vmcnt(0)
    s_endpgm""".split("\n")
            continue
        out.append(l)
    s = "\n".join(out)
    s = re.sub(r"\.amdhsa_next_free_sgpr \d+", ".amdhsa_next_free_sgpr 102", s)
    if groups is None:
        groups = [(k, 0, int(g), 0, int(b)//64) for k,(n,g,b) in enumerate(info)]
    body = """.p2align 8
.globl kdiag_kernel
.type kdiag_kernel,@function
kdiag_kernel:
    s_cmp_ge_u32 s2, 1
    s_cbranch_scc1 KD_done
    s_load_dwordx2 s[4:5], s[0:1], 136
    s_load_dwordx2 s[6:7], s[0:1], 128
    s_waitcnt lgkmcnt(0)
    s_mov_b32 s12, s6
    s_mov_b32 s13, s7
    s_mov_b32 s14, 256
    s_mov_b32 s15, 0x20000
"""
    for gi,(k,lo,hi,wlo,whi) in enumerate(groups):
        body += f"""    s_add_u32 s8, s4, {WS_DIAG + k * 0x20000}
    s_addc_u32 s9, s5, 0
    s_mov_b32 s10, 0x20000
    s_mov_b32 s11, 0x20000
    v_mov_b32 v4, -1
    v_mov_b32 v5, 0
    v_mov_b32 v6, -1
    v_mov_b32 v7, 0
    v_add_u32 v1, {lo}, v0
    v_lshlrev_b32 v1, 7, v1
    s_mov_b32 s16, {lo}
KD_l{gi}:
"""
        for w in range(wlo, whi):
            body += f"""    buffer_load_dwordx2 v[2:3], v1, s[8:11], 0 offen offset:{8*w}
    s_waitcnt vmcnt(0)
    v_min_u32 v4, v4, v2
    v_max_u32 v5, v5, v2
    v_min_u32 v6, v6, v3
    v_max_u32 v7, v7, v3
"""
        body += f"""    v_add_u32 v1, {64*128}, v1
    s_add_u32 s16, s16, 64
    s_cmp_lt_u32 s16, {hi}
    s_cbranch_scc1 KD_l{gi}
    v_not_b32 v4, v4
    v_not_b32 v6, v6
    v_mov_b32 v8, {16*gi}
    buffer_atomic_umax v4, v8, s[12:15], 0 offen
    buffer_atomic_umax v5, v8, s[12:15], 0 offen offset:4
    buffer_atomic_umax v6, v8, s[12:15], 0 offen offset:8
    buffer_atomic_umax v7, v8, s[12:15], 0 offen offset:12
    s_waitcnt vmcnt(0)
"""
    body += """    v_lshlrev_b32 v1, 2, v0
    v_mov_b32 v9, 0
    buffer_load_dword v2, v1, s[12:15], 0 offen sc0 sc1
    buffer_load_dword v3, v9, s[12:15], 0 offen sc0 sc1
    s_waitcnt vmcnt(0)
    v_not_b32 v3, v3
    v_not_b32 v4, v2
    v_and_b32 v5, 1, v0
    v_cmp_eq_u32 vcc, 0, v5
    s_nop 1
    v_cndmask_b32 v2, v2, v4, vcc
    v_mov_b32 v10, v2
    v_sub_u32 v2, v2, v3
""" + (f"""    s_nop 1
    v_readlane_b32 s24, v10, {spin}
KD_spin:
    s_memrealtime s[22:23]
    s_waitcnt lgkmcnt(0)
    s_sub_u32 s25, s22, s24
    s_cmp_lt_u32 s25, 10000
    s_cbranch_scc1 KD_spin
""" if spin is not None else "") + f"""    v_cmp_gt_u32 vcc, {4*len(groups)}, v0
    s_and_saveexec_b64 s[20:21], vcc
    buffer_store_dword v2, v1, s[12:15], 0 offen
    s_waitcnt vmcnt(0)
KD_done:
    s_endpgm
"""
    desc = """.p2align 6
.amdhsa_kernel kdiag_kernel
  .amdhsa_next_free_vgpr 16
  .amdhsa_next_free_sgpr 32
  .amdhsa_accum_offset 16
  .amdhsa_group_segment_fixed_size 0
  .amdhsa_kernarg_size 144
  .amdhsa_user_sgpr_count 2
  .amdhsa_user_sgpr_kernarg_segment_ptr 1
  .amdhsa_system_sgpr_workgroup_id_x 1
.end_amdhsa_kernel
"""
    s = s.replace(launches[-1] + "\n", launches[-1] + "\n; @launch kernel=kdiag_kernel grid=(1,1,1) block=(64,1,1) lds=0\n")
    s = s.replace('.section .rodata,"a"\n', body + '.section .rodata,"a"\n' + desc)
    return s
if __name__ == "__main__":
    g = None
    if len(sys.argv) > 3:
        g = eval(sys.argv[3])
    if len(sys.argv) > 4:
        for w in eval(sys.argv[4]):
            open(sys.argv[2].replace(".s", f"_sp{w}.s"), "w").write(instrument(open(sys.argv[1]).read(), g, w))
    else:
        open(sys.argv[2], "w").write(instrument(open(sys.argv[1]).read(), g))
```

```python
import re
TRANS = ("v_exp_f32", "v_log_f32", "v_rcp_f32", "v_rsq_f32", "v_sqrt_f32", "v_sin_f32", "v_cos_f32")

def regs(tok):
    tok = tok.strip()
    if tok.startswith("-"): tok = tok[1:]
    if tok.startswith("|"): tok = tok.strip("|")
    m = re.fullmatch(r"([vs])(\d+)", tok)
    if m: return {(m.group(1), int(m.group(2)))}
    m = re.fullmatch(r"([vs])\[(\d+):(\d+)\]", tok)
    if m: return {(m.group(1), i) for i in range(int(m.group(2)), int(m.group(3)) + 1)}
    if tok == "vcc": return {("s", 106), ("s", 107)}
    if tok == "vcc_lo": return {("s", 106)}
    if tok == "vcc_hi": return {("s", 107)}
    if tok == "m0": return {("m", 0)}
    if tok in ("exec", "exec_lo", "exec_hi"): return {("e", 0)}
    return set()

class Ins:
    def __init__(self, text):
        self.text = text
        t = text.split(";")[0].strip()
        self.op = t.split()[0] if t else ""
        rest = t[len(self.op):].strip()
        parts = [p.strip() for p in re.split(r",(?![^\[]*\])", rest)] if rest else []
        ops = []
        for p in parts:
            ops.append(p.split()[0] if p else p)
        self.mods = " " + rest + " "
        op = self.op
        self.kind = "other"; self.w = set(); self.r = set(); self.states = 1
        self.passes = 0; self.A = set(); self.C = set(); self.store_wide = set()
        R = [regs(o) for o in ops]
        U = lambda l: set().union(*l) if l else set()
        if op.startswith("v_mfma"):
            self.kind = "mfma"; self.passes = 8 if "32x32x16" in op else 4
            self.w = R[0]; self.A = R[1] | R[2]; self.C = R[3]; self.r = self.A | self.C
        elif op.startswith("v_"):
            self.kind = "valu"
            if op.startswith("v_permlane") and "swap" in op:
                self.w = R[0] | R[1]; self.r = R[0] | R[1]
            elif op.startswith("v_cmp"):
                self.w = R[0]; self.r = U(R[1:])
            elif op.startswith(("v_add_co", "v_sub_co", "v_addc_co", "v_subb_co", "v_subrev_co")):
                self.w = R[0] | R[1]; self.r = U(R[2:])
            else:
                self.w = R[0]; self.r = U(R[1:])
                if op.startswith(("v_fmac", "v_mac", "v_dot2c", "v_writelane")): self.r |= R[0]
            if op == "v_nop": self.kind = "other"
        elif op.startswith("ds_"):
            self.kind = "ds"
            if op.startswith(("ds_read", "ds_bpermute", "ds_permute", "ds_swizzle")):
                self.w = R[0]; self.r = U(R[1:])
            else:
                self.r = U(R)
        elif op.startswith(("buffer_", "global_")):
            self.kind = "vmem"
            if " lds " in self.mods:
                self.r = U(R) | {("m", 0)}; self.lds = True
            elif "load" in op:
                self.w = R[0]; self.r = U(R[1:])
            else:
                self.r = U(R)
                if op.endswith(("x3", "x4")): self.store_wide = R[0] if op.startswith("buffer_") else R[1]
        elif op == "s_nop":
            self.states = int(ops[0], 0) + 1
        elif op.startswith("s_"):
            self.kind = "salu"
            if op.startswith(("s_cmp", "s_cbranch", "s_branch", "s_waitcnt", "s_barrier", "s_endpgm", "s_sleep", "s_setprio", "s_bitcmp")):
                self.r = U(R)
            else:
                self.w = R[0] if R else set(); self.r = U(R[1:])
                if "saveexec" in op: self.w |= {("e", 0)}

def need(p, c):
    n = 0
    vw = {x for x in p.w if x[0] == "v"}
    sw = {x for x in p.w if x[0] == "s"}
    if p.kind == "valu":
        if c.kind == "mfma" and vw & c.r: n = max(n, 2)
        if c.kind == "valu":
            if c.op.startswith("v_permlane") and vw & c.r: n = max(n, 2)
            if c.op.startswith(("v_readfirstlane", "v_readlane")) and vw & c.r: n = max(n, 1)
            if "dpp" in c.text and vw & c.r: n = max(n, 2)
            if p.op.startswith(TRANS) and vw & c.r: n = max(n, 1)
            if sw & c.r: n = max(n, 4 if c.op.startswith(("v_readlane", "v_writelane")) else 2)
        if c.kind == "vmem" and sw & c.r: n = max(n, 5)
    if p.kind == "salu" and ("m", 0) in p.w and c.kind == "vmem" and ("m", 0) in c.r: n = max(n, 1)
    if p.kind == "mfma":
        far = 12 if p.passes == 8 else 8
        if c.kind in ("valu", "vmem", "ds") and p.w & (c.r | c.w): n = max(n, far)
        if c.kind == "mfma":
            if p.w & c.A: n = max(n, far)
            if p.w & c.C and not (p.w == c.C and p.passes == c.passes): n = max(n, far - 2)
            if p.w & c.w and not (p.w == c.C): n = max(n, far)
        if c.kind == "valu" and p.C & c.w: n = max(n, 7 if p.passes == 8 else 3)
    if p.store_wide and p.store_wide & c.w: n = max(n, 2 if c.kind == "valu" else 1)
    return n

class Asm:
    def __init__(self):
        self.l = []
    def __call__(self, s):
        for ln in s.strip("\n").split("\n"):
            ln = ln.strip()
            if ln: self.l.append(ln)
    def label(self, s):
        self.l.append(s + ":")
    def finish(self, verbose=True):
        out = []; hist = []
        pads = 0
        for ln in self.l:
            if ln.endswith(":") or ln.startswith(".") or ln.startswith(";"):
                out.append(ln); continue
            c = Ins(ln)
            d = 0; k = 0
            for p in reversed(hist[-24:]):
                k = max(k, need(p, c) - d)
                d += p.states
            if k > 0:
                nop = Ins(f"s_nop {k-1}")
                out.append(nop); hist.append(nop); pads += 1
            out.append(c); hist.append(c)
            if c.op in ("s_branch", "s_endpgm"): hist = []
        pos = {x[:-1]: i for i, x in enumerate(out) if isinstance(x, str) and x.endswith(":")}
        for i, x in enumerate(out):
            if isinstance(x, Ins) and x.op.startswith(("s_branch", "s_cbranch")):
                tgt = x.text.split()[1]
                h = [y for y in out[max(0, i - 40):i + 1] if isinstance(y, Ins)]
                d0 = 0
                for y in out[pos[tgt]:pos[tgt] + 40]:
                    if not isinstance(y, Ins): continue
                    d = d0
                    for p in reversed(h[-24:]):
                        if need(p, y) > d:
                            raise SystemExit(f"HAZARD across branch '{x.text}': '{p.text}' -> '{y.text}' dist {d}")
                        d += p.states
                    d0 += y.states
                    if d0 > 20 or y.op in ("s_branch", "s_endpgm"): break
        if verbose: print("auto pads:", pads, "instructions:", sum(isinstance(x, Ins) for x in out))
        return [x if isinstance(x, str) else "    " + x.text for x in out]
```

```python
import sys
sys.path.insert(0, "tools")
from asmlib import *
NAME = "concat_heads__ssm_conv_h3__ssm_conv_s5__prompt"
OPT = dict(out="/code/" + NAME + ".s", stamp=0, list=0, barpos=14, flagk=0, kvnt=1, qnt=1, sknt=1, outnt=0, lprio=2, gprio=0,
           cpf=0, spin=20000)
for x in sys.argv[1:]:
    k, v = x.split("=")
    OPT[k] = v if k == "out" else int(v)
STAMP = OPT["stamp"]
WS_KVT, WS_ZT, WS_HF, WS_E, WS_FL, WS_ST = 0, 4 << 20, 8 << 20, 16 << 20, 17 << 20, 64 << 20
P = dict(q=16, k=18, v=20, shift=22, ssmk=24, ssmD=26, x=28, Lre=30, Lim=32, Bre=34, Bim=36, Cre=38, Cim=40,
         logdt=42, Dskip=44, out=46, dbg=48, ws=50)
LDSF = 163840 - 64
A2_BASE, A2_W1, A2_KV, A2_WB = 98304, 4160, 8320, 12928
a = Asm()

def srd(d, ptr, nbytes, off=0):
    b = P[ptr]
    if off:
        a(f"s_add_u32 s{d}, s{b}, {off}\ns_addc_u32 s{d+1}, s{b+1}, 0")
    else:
        a(f"s_mov_b32 s{d}, s{b}\ns_mov_b32 s{d+1}, s{b+1}")
    a(f"s_mov_b32 s{d+2}, {nbytes}\ns_mov_b32 s{d+3}, 0x00020000")
def srd_sel(d, p0, p1, nbytes):
    a(f"""s_cselect_b32 s{d}, s{P[p1]}, s{P[p0]}
    s_cselect_b32 s{d+1}, s{P[p1]+1}, s{P[p0]+1}
    s_mov_b32 s{d+2}, {nbytes}
    s_mov_b32 s{d+3}, 0x00020000""")
def S(d): return f"s[{d}:{d+3}]"
def V(d, n): return f"v[{d}:{d+n-1}]"
XST = [0, 0]
def streg(i): return 84 + 2 * i if i < 8 else XST[i - 8]
def stamp(i):
    if STAMP: a(f"s_memrealtime s[{streg(i)}:{streg(i)+1}]")
def stamp_out():
    if not STAMP: return
    srd(52, "ws", 1 << 20, WS_ST)
    a("""s_waitcnt vmcnt(0) lgkmcnt(0)
    s_lshl_b32 s8, s2, 3
    s_add_u32 s8, s8, s3
    s_lshl_b32 s8, s8, 6
    v_mov_b32 v12, s8
    s_getreg_b32 s8, hwreg(HW_REG_XCC_ID)
    v_mov_b32 v10, s8
    v_mov_b32 v11, s15
    s_mov_b64 exec, 1""")
    for i in range(10): a(f"v_mov_b32 v{i}, s{streg(i)}")
    a("""buffer_store_dwordx4 v[0:3], v12, s[52:55], 0 offen
    buffer_store_dwordx4 v[4:7], v12, s[52:55], 0 offen offset:16
    buffer_store_dwordx4 v[8:11], v12, s[52:55], 0 offen offset:32
    s_waitcnt vmcnt(0)""")

def cmul(d, x, y, c=None):
    (dr, di), (xr, xi), (yr, yi) = d, x, y
    if c is None:
        a(f"v_mul_f32 v{dr}, v{xr}, v{yr}\nv_mul_f32 v{di}, v{xr}, v{yi}")
    else:
        a(f"v_fma_f32 v{dr}, v{xr}, v{yr}, v{c[0]}\nv_fma_f32 v{di}, v{xr}, v{yi}, v{c[1]}")
    a(f"v_fma_f32 v{dr}, -v{xi}, v{yi}, v{dr}\nv_fmac_f32 v{di}, v{xi}, v{yr}")
def pk(d, bc, sel, x, c=None, neg=False, swapx=False, neglo=False):
    xs, xh = (1, 0) if swapx else (0, 1)
    nl = 1 if (neg or neglo) else 0
    nh = 1 if neg else 0
    if c is None:
        s = f"v_pk_mul_f32 v[{d}:{d+1}], v[{bc}:{bc+1}], v[{x}:{x+1}] op_sel:[{sel},{xs}] op_sel_hi:[{sel},{xh}]"
        if nl or nh: s += f" neg_lo:[{nl},0] neg_hi:[{nh},0]"
    else:
        s = f"v_pk_fma_f32 v[{d}:{d+1}], v[{bc}:{bc+1}], v[{x}:{x+1}], v[{c}:{c+1}] op_sel:[{sel},{xs},0] op_sel_hi:[{sel},{xh},1]"
        if nl or nh: s += f" neg_lo:[{nl},0,0] neg_hi:[{nh},0,0]"
    return s
def pkcmul(d, L, x, c=None, conjL=False):
    xr, xi = x if isinstance(x, tuple) else (x, x + 2)
    dr, di = d if isinstance(d, tuple) else (d, d + 2)
    cr, ci = (None, None) if c is None else (c if isinstance(c, tuple) else (c, c + 2))
    return [pk(dr, L, 0, xr, cr), pk(di, L, 0, xi, ci), pk(dr, L, 1, xi, dr, neg=not conjL), pk(di, L, 1, xr, di, neg=conjL)]
def interleave(*lists):
    n = max(len(l) for l in lists)
    for i in range(0, n, 2):
        for l in lists:
            for s in l[i:i + 2]: a(s)

def poll(tag, vdst, vaddr, srdn, vnonce, cnt="s15"):
    a(f"s_mov_b32 {cnt}, 0")
    a.label(f"{tag}_poll")
    a(f"""buffer_load_dwordx2 v[{vdst}:{vdst+1}], v{vaddr}, {S(srdn)}, 0 offen sc1
    s_waitcnt vmcnt(0)
    v_cmp_ne_u64 vcc, v[{vdst}:{vdst+1}], v[{vnonce}:{vnonce+1}]
    s_cbranch_vccz {tag}_ok
    s_add_u32 {cnt}, {cnt}, 1
    s_cmp_lt_u32 {cnt}, {OPT['spin']}
    s_cbranch_scc1 {tag}_poll""")
    a.label(f"{tag}_ok")
def nonce_fix(tag, vn, vzero, srdn, cnt="s15"):
    a(f"s_mov_b32 {cnt}, 0")
    a.label(f"{tag}_np")
    a(f"""v_cmp_eq_u32 vcc, 0, v{vn}
    s_cbranch_vccz {tag}_nok
    buffer_load_dwordx2 v[{vn}:{vn+1}], v{vzero}, {S(srdn)}, 0 offen sc1
    s_add_u32 {cnt}, {cnt}, 1
    s_waitcnt vmcnt(0)
    s_cmp_lt_u32 {cnt}, {OPT['spin']}
    s_cbranch_scc1 {tag}_np""")
    a.label(f"{tag}_nok")

def dma_voffsets(d, srow, rowmul_lane, step, t0, t1):
    a(f"""v_add_u32 v{t0}, {srow}, v{t0}
    v_lshlrev_b32 v{t0}, 11, v{t0}
    v_lshrrev_b32 v{t1}, 4, v2
    v_xor_b32 v{t1}, v{t1}, v2
    v_and_b32 v{t1}, 7, v{t1}
    v_lshl_add_u32 v{d}, v{t1}, 4, v{t0}
    v_xor_b32 v{d+1}, 64, v{d}
    v_add_u32 v{d+1}, {step-1024}, v{d+1}
    v_add_u32 v{d+2}, {2*(step-1024)}, v{d}
    v_add_u32 v{d+3}, {2*(step-1024)}, v{d+1}""")

def role_G():
    XST[:] = [24, 26]
    sT0, sT1, sT2, sE, sHF, sFL, sDBG, sC = 52, 56, 60, 64, 68, 72, 76, 80
    vM, vH, vCH = 3, 4, 5
    L1, C2, L8, L16, L32, L64, L128 = 6, 8, 12, 14, 16, 18, 20
    vX, vZero, vD, vE, vL16, vL16b = 22, 23, 24, 25, 26, 27
    GR = 28
    vN = 30
    RA = 32
    pr = lambda x: (x, x + 1)
    if OPT["gprio"]: a(f"s_setprio {OPT['gprio']}")
    a(f"""v_and_b32 v{vM}, 31, v2
    v_lshrrev_b32 v{vH}, 5, v2
    s_lshr_b32 s8, s3, 1            ; wm
    s_and_b32 s9, s3, 1             ; wn
    s_lshl_b32 s10, s7, 6
    s_lshl_b32 s11, s9, 5
    s_add_u32 s10, s10, s11
    v_add_u32 v{vCH}, s10, v{vM}
    v_lshlrev_b32 v48, 1, v{vCH}
    v_mov_b32 v{vZero}, 0
    s_waitcnt lgkmcnt(0)""")
    srd(sDBG, "dbg", 256)
    a(f"""s_or_b32 s10, s2, s3
    s_cmp_eq_u32 s10, 0
    s_cbranch_scc0 G_nononce
    s_memrealtime s[10:11]
    s_waitcnt lgkmcnt(0)
    s_or_b32 s10, s10, 1
    v_mov_b32 v50, s10
    v_mov_b32 v51, s11
    s_mov_b64 exec, 1
    buffer_store_dwordx2 v[50:51], v{vZero}, {S(sDBG)}, 0 offen sc1
    s_mov_b64 exec, -1""")
    a.label("G_nononce")
    srd(sT0, "logdt", 2048); srd(sT1, "Lre", 2048); srd(sT2, "Lim", 2048)
    a(f"""buffer_load_ushort v53, v48, {S(sT0)}, 0 offen
    buffer_load_ushort v54, v48, {S(sT1)}, 0 offen
    buffer_load_ushort v55, v48, {S(sT2)}, 0 offen""")
    srd(sT1, "Dskip", 2048)
    a(f"""s_lshl_b32 s10, s7, 7
    v_lshl_add_u32 v49, v{vM}, 2, s10     ; (64nt+2n)*2
    buffer_load_dword v{vD}, v49, {S(sT1)}, 0 offen""")
    srd(sT0, "x", 4 << 20); srd(sT2, "out", 16 << 20)
    srd(sE, "ws", 33 * 16384, WS_E); srd(sHF, "ws", 8 << 20, WS_HF); srd(sFL, "ws", 24576, WS_FL)
    a("s_cmp_eq_u32 s9, 1")
    srd_sel(sC, "Cre", "Cim", 2 << 20)
    a(f"""s_lshl_b32 s10, s6, 7
    s_lshl_b32 s11, s3, 5
    s_add_u32 s10, s10, s11
    v_lshl_add_u32 v50, v{vH}, 2, s10
    v_lshl_add_u32 v{vX}, v50, 11, v49
    v_xor_b32 v50, 1, v{vH}
    v_lshlrev_b32 v50, 14, v50
    v_lshl_add_u32 v{vE}, v{vCH}, 4, v50
    v_lshlrev_b32 v{vL16}, 4, v2
    v_add_u32 v{vL16b}, 4096, v{vL16}
    v_lshrrev_b32 v50, 1, v{vM}
    v_and_b32 v50, 7, v50
    v_xor_b32 v50, v50, v{vH}
    v_lshlrev_b32 v50, 4, v50
    v_lshl_add_u32 v50, v{vM}, 7, v50
    s_lshl_b32 s10, s8, 13
    s_lshl_b32 s11, s9, 13
    s_add_u32 s11, s11, 16384
    v_add_u32 v{RA}, s10, v50
    v_add_u32 v{RA+4}, s11, v50""")
    for ks in range(1, 4):
        a(f"v_xor_b32 v{RA+ks}, {32*ks}, v{RA}\nv_xor_b32 v{RA+4+ks}, {32*ks}, v{RA+4}")
    for i in range(8):
        a(f"v_add_u32 v{RA+8+i}, 65536, v{RA+i}")
    a(f"""s_lshl_b32 s10, s3, 2
    s_add_u32 s10, s10, {LDSF}
    v_mov_b32 v50, s10
    ds_write_b32 v50, v{vZero}""")
    for i in range(64): a(f"v_mov_b32 v{64+i}, 0")
    t = 48
    a(f"""s_waitcnt vmcnt(1)
    v_lshlrev_b32 v{t+5}, 16, v{t+5}
    v_lshlrev_b32 v{t+6}, 16, v{t+6}
    v_lshlrev_b32 v{t+7}, 16, v{t+7}
    v_mul_f32 v{t+5}, 0x3fb8aa3b, v{t+5}
    v_exp_f32 v{t+5}, v{t+5}
    v_cvt_pk_bf16_f32 v{t+5}, v{t+5}, v{t+5}
    v_lshlrev_b32 v{t+5}, 16, v{t+5}
    v_mul_f32 v{t+8}, v{t+5}, v{t+6}
    v_mul_f32 v{t+9}, v{t+5}, v{t+7}
    v_mul_f32 v{t+8}, 0x3fb8aa3b, v{t+8}
    v_exp_f32 v{t+8}, v{t+8}
    v_mul_f32 v{t+9}, 0.15915494, v{t+9}
    v_cos_f32 v{t+10}, v{t+9}
    v_sin_f32 v{t+11}, v{t+9}
    v_mul_f32 v{L1}, v{t+8}, v{t+10}
    v_mul_f32 v{L1+1}, v{t+8}, v{t+11}
    v_add_f32 v{t+8}, -1.0, v{L1}
    v_mul_f32 v{t+9}, v{t+6}, v{t+6}
    v_fmac_f32 v{t+9}, v{t+7}, v{t+7}
    v_rcp_f32 v{t+9}, v{t+9}
    v_mul_f32 v{t+10}, v{t+8}, v{t+6}
    v_fmac_f32 v{t+10}, v{L1+1}, v{t+7}
    v_mul_f32 v{t+11}, v{L1+1}, v{t+6}
    v_fma_f32 v{t+11}, -v{t+8}, v{t+7}, v{t+11}
    v_add_f32 v{t+9}, v{t+9}, v{t+9}
    v_mul_f32 v{C2}, v{t+10}, v{t+9}
    v_mul_f32 v{C2+1}, v{t+11}, v{t+9}""")
    cmul((48, 49), pr(L1), pr(L1)); cmul((50, 51), (48, 49), (48, 49))
    cmul(pr(L8), (50, 51), (50, 51)); cmul(pr(L16), pr(L8), pr(L8)); cmul(pr(L32), pr(L16), pr(L16))
    cmul(pr(L64), pr(L32), pr(L32)); cmul(pr(L128), pr(L64), pr(L64))
    def reads(slot, fr):
        o = (slot & 1) * 32768; r = RA + 8 * (slot >> 1)
        l = []
        for ks in range(4):
            f = fr + 16 * ks
            l += [f"ds_read_b128 {V(f,4)}, v{r+ks} offset:{o}", f"ds_read_b128 {V(f+8,4)}, v{r+4+ks} offset:{o}",
                  f"ds_read_b128 {V(f+12,4)}, v{r+4+ks} offset:{o+4096}", f"ds_read_b128 {V(f+4,4)}, v{r+ks} offset:{o+4096}"]
        return l
    def step(n, last=False, extra=None):
        fc, fn = (128, 192) if n % 2 == 0 else (192, 128)
        rd = [] if last else reads((n + 1) & 3, fn)
        for idx in range(16):
            ks, mt_, pt = idx >> 2, (idx >> 1) & 1, idx & 1
            if idx == OPT["barpos"] and not last: a("s_waitcnt lgkmcnt(0)\ns_barrier")
            c = 64 + 32 * mt_ + 16 * pt; f = fc + 16 * ks
            a(f"v_mfma_f32_32x32x16_bf16 {V(c,16)}, {V(f+4*mt_,4)}, {V(f+8+4*pt,4)}, {V(c,16)}")
            for s in rd[2 * idx:2 * idx + 2]: a(s)
            if extra: extra(idx)
        if OPT["barpos"] == 16 and not last: a("s_waitcnt lgkmcnt(0)\ns_barrier")
    stamp(0)
    a("s_waitcnt lgkmcnt(0)\ns_barrier")
    stamp(1)
    for s in reads(0, 128): a(s)
    a("s_mov_b32 s12, 0\ns_waitcnt lgkmcnt(0)\ns_barrier")
    a.label("G1_loop")
    def exn(idx):
        if idx == 10: a(f"buffer_load_dwordx2 v[{vN}:{vN+1}], v{vZero}, {S(sDBG)}, 0 offen sc1")
    step(0, extra=exn); step(1); step(2)
    a("""s_cmp_eq_u32 s12, 3
    s_cbranch_scc1 G1_last""")
    step(3)
    a("""s_add_u32 s12, s12, 1
    s_branch G1_loop""")
    a.label("G1_last")
    XR = 32
    def exx(i):
        g, r = i >> 2, i & 3
        if r % 2 == 0: a(f"s_mov_b32 s13, {(8*g + r)*2048}")
        a(f"buffer_load_dword v{XR+i}, v{vX}, {S(sT0)}, s13 offen offset:{(r&1)*2048}")
    step(15, last=True, extra=exx)
    stamp(2)
    U = lambda part, m, j, base=64: base + 32 * m + 16 * part + 2 * j
    SS = lambda m, par: 48 + 8 * par + 4 * m
    for j in range(1, 8):
        ls = []
        for m in range(2):
            prev = (U(0, m, 0), U(1, m, 0)) if j == 1 else SS(m, (j - 1) & 1)
            ls.append(pkcmul(SS(m, j & 1), L1, prev, (U(0, m, j), U(1, m, j))))
        interleave(*ls)
    A0, A16 = 56, 60
    for s in pkcmul(A16, L8, A0, A16): a(s)
    cmul((48, 50), pr(L16), (A16, A16 + 2), (A16 + 1, A16 + 3))
    a("""v_mov_b32 v49, v48
    v_mov_b32 v51, v50
    s_lshl_b32 s12, s6, 1
    s_add_u32 s12, s12, s8          ; chunk c
    v_permlane32_swap_b32 v48, v49
    v_permlane32_swap_b32 v50, v51
    s_lshl_b32 s13, s12, 14""")
    cmul((GR, GR + 1), pr(L32), (48, 50), (49, 51))
    a("s_waitcnt vmcnt(16)")
    nonce_fix("G", vN, vZero, sDBG)
    a(f"""s_mov_b32 exec_hi, 0
    buffer_store_dwordx4 {V(GR,4)}, v{vE}, {S(sE)}, s13 offen sc1
    s_cmp_eq_u32 s12, 0
    s_cbranch_scc0 G_pub1
    s_not_b64 exec, exec
    v_mov_b32 v{GR}, 0
    v_mov_b32 v{GR+1}, 0
    buffer_store_dwordx4 {V(GR,4)}, v{vE}, {S(sE)}, 0 offen sc1""")
    a.label("G_pub1")
    a("s_mov_b64 exec, -1")
    stamp(3)
    for j in range(8):
        ls = []
        for m in range(2):
            ur, ui = U(0, m, j), U(1, m, j); dr, di = ur + 64, ui + 64
            ls.append([pk(dr, C2, 0, ur), pk(di, C2, 0, ui, neg=True), pk(dr, C2, 1, ui, dr, neg=True), pk(di, C2, 1, ur, di, neg=True)])
        interleave(*ls)
    WT = 64
    a(f"""v_cmp_eq_u32 vcc, 1, v{vH}
    v_mov_b32 v52, 1.0
    v_cndmask_b32 v{WT}, v52, v{L64}, vcc
    v_cndmask_b32 v{WT+1}, 0, v{L64+1}, vcc
    v_cndmask_b32 v96, 0, v48, vcc
    v_cndmask_b32 v98, 0, v50, vcc
    v_cndmask_b32 v52, v52, v{L32}, vcc
    v_cndmask_b32 v53, 0, v{L32+1}, vcc""")
    wl = []
    for i in range(1, 16):
        wl += [pk(WT + 2 * i, L128, 0, WT + 2 * i - 2), pk(WT + 2 * i, L128, 1, WT + 2 * i - 2, WT + 2 * i, swapx=True, neglo=True)]
    sv = Asm(); g = globals(); old = g["a"]; g["a"] = sv
    cmul((97, 99), pr(L16), (96, 98), (A16, A16 + 2))
    for s in pkcmul(100, L8, 96, A0): sv(s)
    cmul((104, 106), pr(C2), (52, 53))
    cmul((105, 107), pr(L16), (104, 106))
    for s in pkcmul(108, L8, 104): sv(s)
    for m in range(2):
        ur, ui, dr, di = 96 + 4 * m, 98 + 4 * m, 112 + 4 * m, 114 + 4 * m
        for s in [pk(dr, C2, 0, ur), pk(di, C2, 0, ui, neg=True), pk(dr, C2, 1, ui, dr, neg=True), pk(di, C2, 1, ur, di, neg=True)]: sv(s)
    sv(f"""s_lshl_b32 s13, s3, 13
    s_add_u32 s13, s13, 65536
    v_and_b32 v48, 1, v2
    v_and_b32 v49, 2, v2
    v_lshl_or_b32 v48, v49, 1, v48
    v_bfe_u32 v49, v2, 2, 1
    v_lshl_or_b32 v48, v49, 1, v48      ; f(c)
    v_lshlrev_b32 v49, 2, v{vH}
    v_xor_b32 v48, v48, v49
    v_lshlrev_b32 v48, 4, v48
    v_lshl_add_u32 v48, v{vM}, 7, v48
    v_add_u32 v120, s13, v48
    v_xor_b32 v121, 16, v120
    v_xor_b32 v122, 32, v120
    v_xor_b32 v123, 48, v120
    v_bfe_u32 v48, v2, 2, 2              ; r
    v_lshl_add_u32 v49, v{vH}, 3, v48    ; 8kg + r
    v_lshlrev_b32 v49, 7, v49
    v_and_b32 v50, 1, v48
    v_and_b32 v48, 2, v48
    v_lshl_or_b32 v48, v48, 1, v50       ; f(r), q=0
    v_bfe_u32 v50, v2, 4, 1
    v_bfe_u32 v51, v2, 1, 1
    v_lshl_or_b32 v50, v50, 1, v51
    v_xor_b32 v48, v48, v50
    v_lshl_add_u32 v49, v48, 4, v49
    v_and_b32 v48, 1, v2
    v_lshl_add_u32 v49, v48, 3, v49
    v_add_u32 v124, s13, v49
    v_xor_b32 v125, 64, v124
    v_xor_b32 v126, 32, v124
    v_add_u32 v126, 512, v126
    v_xor_b32 v127, 64, v126""")
    g["a"] = old
    o = sv.l
    for i in range(max(len(wl), len(o))):
        if i < len(wl): a(wl[i])
        if i < len(o): a(o[i])
    stamp(4)
    EB = 192
    a(f"""v_mov_b32 v52, 0
    v_mov_b32 v53, 0
    s_cmp_eq_u32 s12, 0
    s_cbranch_scc1 G_lbdone
    s_mov_b32 s15, 0""")
    a.label("G_lb")
    a("""s_lshl_b32 s13, s12, 14
    s_sub_u32 s13, s13, 16384""")
    for i in range(16):
        a(f"buffer_load_dwordx4 {V(EB+4*i,4)}, v{vE}, {S(sE)}, s13 offen sc1")
        if i < 15: a("s_sub_u32 s13, s13, 32768\ns_cbranch_scc1 G_lb1")
    a.label("G_lb1")
    a("""v_mov_b32 v52, 0
    v_mov_b32 v53, 0
    v_mov_b32 v54, 0
    v_mov_b32 v55, 0
    s_mov_b64 s[10:11], -1
    s_sub_u32 s13, s12, 1
    s_waitcnt vmcnt(0)""")
    for i in range(16):
        e = EB + 4 * i
        a(f"v_cmp_eq_u64 vcc, v[{e+2}:{e+3}], v[{vN}:{vN+1}]")
        a(pk(52, WT + 2 * i, 0, e, 52))
        a(pk(54, WT + 2 * i, 1, e, 54, swapx=True, neglo=True))
        a("s_and_b64 s[10:11], s[10:11], vcc")
        if i < 15: a("s_sub_u32 s13, s13, 2\ns_cbranch_scc1 G_lb2")
    a.label("G_lb2")
    a(f"""s_cmp_eq_u64 s[10:11], -1
    s_cbranch_scc1 G_lb3
    s_add_u32 s15, s15, 1
    s_cmp_lt_u32 s15, {OPT['spin']}
    s_cbranch_scc1 G_lb""")
    a.label("G_lb3")
    a("""v_pk_add_f32 v[52:53], v[52:53], v[54:55]
    v_mov_b32 v54, v52
    v_mov_b32 v55, v53
    v_permlane32_swap_b32 v52, v54
    v_permlane32_swap_b32 v53, v55
    v_pk_add_f32 v[52:53], v[52:53], v[54:55]""")
    a.label("G_lbdone")
    stamp(5)
    ls = []
    for m in range(2):
        pr_, pi_, gr, gi = 104 + 4 * m, 106 + 4 * m, 112 + 4 * m, 114 + 4 * m
        ls.append([pk(gr, 52, 0, pr_, gr), pk(gi, 52, 1, pr_, gi, neg=True), pk(gr, 52, 1, pi_, gr, neg=True), pk(gi, 52, 0, pi_, gi, neg=True)])
    interleave(*ls)
    for j in range(8):
        ls = []
        for m in range(2):
            cur = (U(0, m, j, 128), U(1, m, j, 128))
            prev = 112 + 4 * m if j == 0 else (U(0, m, j - 1, 128), U(1, m, j - 1, 128))
            ls.append(pkcmul(cur, L1, prev, cur, conjL=True))
        interleave(*ls)
    PKB = 192
    for part in range(2):
        for e in range(2):
            for m in range(2):
                q = PKB + 16 * part + 8 * e + 4 * m
                for gq in range(4):
                    a(f"v_cvt_pk_bf16_f32 v{q+gq}, v{U(part,m,2*gq,128)+e}, v{U(part,m,2*gq+1,128)+e}")
                a(f"ds_write_b128 v{120+2*e+m}, {V(q,4)} offset:{part*4096}")
    a("""s_lshl_b32 s10, s12, 18
    s_lshl_b32 s11, s7, 13
    s_add_u32 s10, s10, s11
    s_lshl_b32 s11, s9, 11
    s_add_u32 s10, s10, s11
    s_add_u32 s11, s10, 131072
    s_waitcnt lgkmcnt(0)""")
    TR = 224
    order = [(part, mb, u) for part in range(2) for mb in range(2) for u in range(2)]
    for idx, (part, mb, u) in enumerate(order):
        for q in range(2):
            a(f"ds_read_b64_tr_b16 {V(TR+4*idx+2*q,2)}, v{124+2*q+mb} offset:{part*4096+u*2048}")
    for idx, (part, mb, u) in enumerate(order):
        a(f"s_waitcnt lgkmcnt({14-2*idx})")
        a(f"buffer_store_dwordx4 {V(TR+4*idx,4)}, v{vL16b if part else vL16}, {S(sHF)}, s{10+mb} offen offset:{u*1024} sc1")
    RC0, RCS, VC = 48, 52, 60
    vF, vFA, vT = 16, 17, 18
    FLG = 12
    a(f"""v_lshrrev_b32 v50, 1, v{vM}
    v_and_b32 v50, 7, v50
    v_xor_b32 v50, v50, v{vH}
    v_lshlrev_b32 v50, 4, v50
    v_lshl_add_u32 v{RC0}, v{vM}, 7, v50""")
    for k in range(1, 4): a(f"v_xor_b32 v{RC0+k}, {32*k}, v{RC0}")
    for k in range(4): a(f"v_mov_b32 v{RCS+k}, v{RC0+k}")
    a(f"""v_lshrrev_b32 v56, 3, v2
    v_lshlrev_b32 v56, 1, v56
    s_lshl_b32 s10, s7, 6
    s_add_u32 s10, s10, s8""")
    dma_voffsets(VC, "s10", 2, 32768, 56, 57)
    a(f"""s_lshl_b32 s10, s3, 2
    s_add_u32 s10, s10, {LDSF}
    v_mov_b32 v{vF}, s10
    v_mov_b32 v{vFA}, {LDSF}
    v_mov_b32 v{vT}, 1
    s_lshl_b32 s10, s12, 8
    s_add_u32 s10, s10, 16384
    s_lshl_b32 s11, s7, 4
    s_lshl_b32 s13, s9, 3
    s_add_u32 s11, s11, s13
    s_add_u32 s11, s11, s10
    v_lshl_add_u32 v19, v{vM}, 3, s10
    s_waitcnt vmcnt(0)
    s_mov_b64 exec, 1
    buffer_store_dwordx2 v[{vN}:{vN+1}], v{vZero}, {S(sFL)}, s11 offen sc1
    s_mov_b64 exec, -1
    ds_write_b32 v{vF}, v{vT}""")
    stamp(6)
    XD = 96
    a(f"""v_lshlrev_b32 v20, 16, v{vD}
    v_and_b32 v21, 0xffff0000, v{vD}""")
    for i in range(16):
        a(f"""v_lshlrev_b32 v{XD+2*i}, 16, v{XR+i}
        v_and_b32 v{XD+2*i+1}, 0xffff0000, v{XR+i}""")
    for i in range(16):
        a(f"v_pk_mul_f32 v[{XD+2*i}:{XD+2*i+1}], v[{XD+2*i}:{XD+2*i+1}], v[20:21]")
    for i in range(32): a(f"v_mov_b32 v{64+i}, 0")
    sHB, sST, sCO, sHO, sM0, sRD, sWO, sNEED = 16, 17, 18, 19, 20, 21, 22, 23
    a(f"""s_lshl_b32 s{sHB}, s6, 2
    s_add_u32 s{sHB}, s{sHB}, s3
    s_lshl_b32 s{sHB}, s{sHB}, 17        ; mb*128*1024
    s_and_b32 s{sST}, s4, 3
    s_lshl_b32 s{sST}, s{sST}, 2
    s_and_b32 s10, s4, 4
    s_lshl_b32 s10, s10, 1
    s_add_u32 s{sST}, s{sST}, s10
    s_and_b32 s{sST}, s{sST}, 15         ; s0
    s_lshl_b32 s{sWO}, s9, 13
    s_lshl_b32 s10, s8, 12
    s_add_u32 s{sWO}, s{sWO}, s10
    s_mov_b32 s15, 0""")
    a.label("G_f0")
    a(f"""ds_read_b128 {V(FLG,4)}, v{vFA}
    ds_read_b128 v[56:59], v{vFA} offset:16
    s_waitcnt lgkmcnt(0)
    v_min3_u32 v{vT}, v{FLG}, v{FLG+1}, v{FLG+2}
    v_min3_u32 v{vT}, v{vT}, v{FLG+3}, v56
    v_min3_u32 v{vT}, v{vT}, v57, v58
    v_min_u32 v{vT}, v{vT}, v59
    v_cmp_eq_u32 vcc, 0, v{vT}
    s_cbranch_vccz G_f0ok
    s_add_u32 s15, s15, 1
    s_cmp_lt_u32 s15, {OPT['spin']*16}
    s_cbranch_scc1 G_f0""")
    a.label("G_f0ok")
    CF = 192
    def cread(k, rset):
        part, u4 = k >> 2, k & 3
        f = CF + 8 * (k & 3)
        return [f"ds_read_b128 {V(f+4*ct,4)}, v{rset+u4} offset:{part*8192+ct*4096}" for ct in range(2)]
    for k in range(2):
        for s in cread(k, RCS): a(s)
    poll("GH", 56, 19, sFL, vN)
    stamp(7)
    def hload(par, k):
        return f"buffer_load_dwordx4 {V(128+32*par+4*k,4)}, v{vL16b if k >= 4 else vL16}, {S(sHF)}, s{sHO} offen offset:{(k&3)*1024} sc1"
    def cdma(i):
        return f"buffer_load_dwordx4 v{VC+i}, {S(sC)}, s{sCO} offen offset:{1024*i} lds"
    for st in range(2):
        a(f"""s_add_u32 s10, s{sST}, {st}
        s_and_b32 s10, s10, 15
        s_lshl_b32 s10, s10, 13
        s_add_u32 s{sHO}, s{sHB}, s10
        s_add_u32 s10, s{sST}, {st+2}
        s_and_b32 s10, s10, 15
        s_lshl_b32 s{sCO}, s10, 7
        s_add_u32 m0, s{sWO}, {(st+2)*16384}""")
        for k in range(8):
            if k < 4: a(cdma(k))
            a(hload(st, k))
    a(f"""s_mov_b32 s{sNEED}, 1
    s_mov_b32 s{sM0}, {4*16384}
    s_mov_b32 s{sRD}, 16384
    s_add_u32 s{sST}, s{sST}, 2""")
    FK_ = OPT["flagk"]
    vm = []; lg = []; cnt = {}
    for s in range(6):
        for k in range(8):
            if s == 5:
                cnt[("vm", k)] = len(vm) - 1 - vm.index(("H", s, k))
                cnt[("lg", k)] = len(lg) - 1 - lg.index(("R", s, k, 1))
                if k == FK_: cnt["vmC"] = len(vm) - 1 - vm.index(("C", s + 2, 3))
                if k == 0: cnt["lgF"] = len(lg) - 1 - lg.index(("FR", s - 1))
            if k == FK_: lg.append(("FW", s))
            kk = k + 2
            lg += [("R", s + kk // 8, kk % 8, 0), ("R", s + kk // 8, kk % 8, 1)]
            if k == 5: lg.append(("FR", s))
            if k < 4: vm.append(("C", s + 4, k))
            vm.append(("H", s + 2, k))
    a.label("G2_loop")
    slow = []
    for par in range(2):
        cur, nxt = RCS + 4 * par, RCS + 4 * (1 - par)
        for k in range(8):
            v_, l_ = cnt[("vm", k)], cnt[("lg", k)]
            if k == FK_: v_ = min(v_, cnt["vmC"])
            if k == 0: l_ = min(l_, cnt["lgF"])
            a(f"s_waitcnt vmcnt({v_}) lgkmcnt({l_})")
            h = 128 + 32 * par + 4 * k; f = CF + 8 * (k & 3)
            a(f"v_mfma_f32_32x32x16_bf16 v[64:79], {V(h,4)}, {V(f,4)}, v[64:79]")
            if k == 0:
                a(f"""v_min3_u32 v{vT}, v{FLG}, v{FLG+1}, v{FLG+2}
                v_min_u32 v{vT}, v{vT}, v{FLG+3}
                v_cmp_gt_u32 vcc, s{sNEED}, v{vT}
                s_add_u32 s{sNEED}, s{sNEED}, 1
                s_cbranch_vccnz G2_slow{par}""")
                a.label(f"G2_back{par}")
                a(f"""s_and_b32 s10, s{sST}, 15
                s_lshl_b32 s10, s10, 13
                s_add_u32 s{sHO}, s{sHB}, s10
                s_add_u32 s10, s{sST}, 2
                s_and_b32 s10, s10, 15
                s_lshl_b32 s{sCO}, s10, 7
                s_add_u32 m0, s{sWO}, s{sM0}
                s_add_u32 s{sST}, s{sST}, 1""")
            if k == FK_:
                a(f"v_mov_b32 v{vT}, s{sNEED}\nds_write_b32 v{vF}, v{vT}")
            if k == 4:
                for u in range(4): a(f"v_add_u32 v{nxt+u}, s{sRD}, v{RC0+u}")
                a(f"""s_add_u32 s{sRD}, s{sRD}, 16384
                s_cmp_eq_u32 s{sRD}, 98304
                s_cselect_b32 s{sRD}, 0, s{sRD}
                s_add_u32 s{sM0}, s{sM0}, 16384
                s_cmp_eq_u32 s{sM0}, 98304
                s_cselect_b32 s{sM0}, 0, s{sM0}""")
            for s in cread((k + 2) % 8, cur if k < 6 else nxt): a(s)
            if k == 5: a(f"ds_read_b128 {V(FLG,4)}, v{vFA}")
            if k < 4: a(cdma(k))
            a(f"v_mfma_f32_32x32x16_bf16 v[80:95], {V(h,4)}, {V(f+4,4)}, v[80:95]")
            a(hload(par, k))
    a(f"""s_cmp_ge_u32 s{sNEED}, 13
    s_cselect_b32 s{sC+2}, 0, s{sC+2}
    s_cmp_ge_u32 s{sNEED}, 15
    s_cselect_b32 s{sHF+2}, 0, s{sHF+2}
    s_cmp_lt_u32 s{sNEED}, 17
    s_cbranch_scc1 G2_loop""")
    stamp(8)
    a(f"""s_lshl_b32 s10, s6, 7
    s_lshl_b32 s11, s3, 5
    s_add_u32 s10, s10, s11
    v_lshl_add_u32 v48, v{vH}, 2, s10
    v_lshlrev_b32 v48, 13, v48
    s_lshl_b32 s10, s7, 8
    s_add_u32 s10, s10, 4096
    v_lshl_add_u32 v49, v{vM}, 3, s10
    v_add_u32 v48, v48, v49""")
    nt = " nt" if OPT["outnt"] else ""
    for i in range(16):
        a(f"""v_add_f32 v{XD+2*i}, v{XD+2*i}, v{64+i}
        v_add_f32 v{XD+2*i+1}, v{XD+2*i+1}, v{80+i}
        s_mov_b32 s10, {(8*(i>>2) + (i&3))*8192}
        buffer_store_dwordx2 v[{XD+2*i}:{XD+2*i+1}], v48, {S(sT2)}, s10 offen{nt}""")
    a("s_waitcnt vmcnt(0) lgkmcnt(0)")
    stamp(9)
    stamp_out()
    a("s_endpgm")
    for par in range(2):
        a.label(f"G2_slow{par}")
        a(f"s_mov_b32 s15, 0\ns_sub_u32 s10, s{sNEED}, 1")
        a.label(f"G2_sl{par}")
        a(f"""ds_read_b128 {V(FLG,4)}, v{vFA}
        s_waitcnt lgkmcnt(0)
        v_min3_u32 v{vT}, v{FLG}, v{FLG+1}, v{FLG+2}
        v_min_u32 v{vT}, v{vT}, v{FLG+3}
        v_cmp_gt_u32 vcc, s10, v{vT}
        s_cbranch_vccz G2_back{par}
        s_add_u32 s15, s15, 1
        s_cmp_lt_u32 s15, {OPT['spin']*16}
        s_cbranch_scc1 G2_sl{par}
        s_branch G2_back{par}""")

def role_L():
    XST[:] = [42, 44]
    sX, sB, sK, sV, sSH, sFL, sDBG, sC = 52, 56, 60, 64, 68, 72, 76, 80
    sKVT, sZT, sQ, sOUT, sSK = 52, 56, 60, 64, 68
    VA, VB, VC = 4, 8, 12
    vK, vKH, vSH, vZero, vN = 16, 17, 18, 19, 20
    if OPT["lprio"]: a(f"s_setprio {OPT['lprio']}")
    a(f"""s_sub_u32 s8, s3, 4
    s_lshl_b32 s10, s6, 7
    s_lshr_b32 s11, s8, 1
    s_lshl_b32 s12, s11, 6
    s_add_u32 s10, s10, s12
    s_and_b32 s9, s8, 1
    s_lshl_b32 s12, s9, 3
    s_add_u32 s10, s10, s12
    v_and_b32 v24, 32, v2
    v_bfe_u32 v25, v2, 3, 1
    v_lshl_add_u32 v24, v25, 4, v24
    v_bfe_u32 v25, v2, 4, 1
    v_add_u32 v24, v24, v25""")
    dma_voffsets(VA, "s10", 1, 4096, 24, 25)
    a("""s_lshl_b32 s10, s7, 6
    s_lshl_b32 s12, s11, 5
    s_add_u32 s10, s10, s12
    v_lshrrev_b32 v24, 3, v2""")
    dma_voffsets(VB, "s10", 1, 16384, 24, 25)
    a("""s_and_b32 s13, s4, 3
    s_lshl_b32 s13, s13, 2
    s_and_b32 s12, s4, 4
    s_lshl_b32 s12, s12, 1
    s_add_u32 s13, s13, s12
    s_and_b32 s13, s13, 15
    s_lshl_b32 s13, s13, 7
    s_lshl_b32 s14, s8, 12
    s_waitcnt lgkmcnt(0)""")
    srd(sX, "x", 4 << 20)
    a("s_cmp_eq_u32 s9, 1")
    srd_sel(sB, "Bre", "Bim", 2 << 20)
    def stage():
        a("s_mov_b32 m0, s14")
        for i in range(4): a(f"buffer_load_dwordx4 v{VA+i}, {S(sX)}, s13 offen offset:{1024*i} lds")
        a("s_add_u32 m0, s14, 16384")
        for i in range(4): a(f"buffer_load_dwordx4 v{VB+i}, {S(sB)}, s13 offen offset:{1024*i} lds")
        a("""s_add_u32 s13, s13, 128
        s_and_b32 s13, s13, 2047
        s_add_u32 s14, s14, 32768
        s_and_b32 s14, s14, 131071""")
    stamp(0)
    a("s_mov_b32 s15, 0")
    a.label("L_pro")
    stage()
    a("""s_add_u32 s15, s15, 1
    s_cmp_lt_u32 s15, 4
    s_cbranch_scc1 L_pro""")
    a(f"""s_lshl_b32 s100, s4, 7
    s_lshl_b32 s10, s5, 2
    s_add_u32 s100, s100, s10
    s_add_u32 s100, s100, s8
    s_lshl_b32 s10, s100, 12
    s_load_dword s30, s[{P['ssmk']}:{P['ssmk']+1}], s10
    s_lshr_b32 s10, s100, 1
    s_lshl_b32 s10, s10, 2
    s_load_dword s31, s[{P['ssmD']}:{P['ssmD']+1}], s10
    s_mul_i32 s101, s8, {A2_WB}
    s_add_u32 s101, s101, {A2_BASE}
    v_mov_b32 v{vZero}, 0
    s_lshl_b32 s10, s3, 2
    s_add_u32 s10, s10, {LDSF}
    v_mov_b32 v22, s10
    ds_write_b32 v22, v{vZero}
    s_lshl_b32 s10, s7, 6
    s_add_u32 s10, s10, s11
    v_lshrrev_b32 v24, 3, v2
    v_lshlrev_b32 v24, 1, v24""")
    dma_voffsets(VC, "s10", 2, 32768, 24, 25)
    a("s_cmp_eq_u32 s9, 1")
    srd_sel(sC, "Cre", "Cim", 2 << 20)
    srd(sK, "k", 4 << 20); srd(sV, "v", 4 << 20); srd(sSH, "shift", 8192)
    srd(sFL, "ws", 24576, WS_FL); srd(sDBG, "dbg", 256)
    vT0, vCH0 = 23, 24
    a(f"""s_movk_i32 s32, 4096
    s_movk_i32 s33, 8192
    s_movk_i32 s34, 12288
    s_lshl_b32 s10, s5, 6
    v_and_b32 v{vT0}, 56, v2
    v_add_u32 v{vT0}, s10, v{vT0}
    s_lshl_b32 s10, s4, 7
    s_lshl_b32 s12, s8, 5
    s_add_u32 s35, s10, s12
    v_and_b32 v25, 7, v2
    v_lshl_add_u32 v{vCH0}, v25, 2, s35
    v_lshlrev_b32 v25, 1, v{vCH0}
    v_lshl_add_u32 v{vK}, v{vT0}, 11, v25
    v_subrev_u32 v{vKH}, 6144, v{vK}
    v_bfrev_b32 v25, 1
    v_cmp_eq_u32 vcc, 0, v{vT0}
    v_cndmask_b32 v{vKH}, v{vKH}, v25, vcc
    v_lshlrev_b32 v{vSH}, 3, v{vCH0}
    s_waitcnt vmcnt(24) lgkmcnt(0)
    s_barrier
    s_waitcnt vmcnt(16)
    s_barrier
    s_mov_b32 s15, 1""")
    a.label("L_loop")
    stage()
    a("""s_cmp_eq_u32 s15, 12
    s_cbranch_scc1 L_out
    s_add_u32 s15, s15, 1
    s_waitcnt vmcnt(16)
    s_barrier
    s_branch L_loop""")
    a.label("L_out")
    SHR, KR, VR = 32, 40, 64
    nt = " nt" if OPT["kvnt"] else ""
    so = ["0", "s32", "s33", "s34"]
    a(f"""buffer_load_dwordx4 {V(SHR,4)}, v{vSH}, {S(sSH)}, 0 offen
    buffer_load_dwordx4 {V(SHR+4,4)}, v{vSH}, {S(sSH)}, 0 offen offset:16""")
    for r in range(8):
        a(f"buffer_load_dwordx2 {V(KR+6+2*r,2)}, v{vK}, {S(sK)}, {so[r>>1]} offen offset:{(r&1)*2048}{nt}")
    for r in range(3):
        a(f"buffer_load_dwordx2 {V(KR+2*r,2)}, v{vKH}, {S(sK)}, {so[r>>1]} offen offset:{(r&1)*2048}{nt}")
    for r in range(8):
        a(f"buffer_load_dwordx2 {V(VR+2*r,2)}, v{vK}, {S(sV)}, {so[r>>1]} offen offset:{(r&1)*2048}{nt}")
    a(f"buffer_load_dwordx2 v[{vN}:{vN+1}], v{vZero}, {S(sDBG)}, 0 offen sc1")
    nA = 22
    a(f"""s_lshl_b32 s14, s9, 13
    s_lshl_b32 s10, s11, 12
    s_add_u32 s14, s14, s10
    s_waitcnt vmcnt({16+nA})
    s_barrier""")
    for st in range(2):
        a(f"s_add_u32 m0, s14, {16384*st}")
        for i in range(4): a(f"buffer_load_dwordx4 v{VC+i}, {S(sC)}, s13 offen offset:{1024*i} lds")
        a("s_add_u32 s13, s13, 128\ns_and_b32 s13, s13, 2047")
    srd(sSK, "ssmk", 4 << 20)
    srd(sKVT, "ws", 4 << 20, WS_KVT); srd(sZT, "ws", 4 << 20, WS_ZT)
    vL16, vL18 = 26, 27
    a(f"""v_lshlrev_b32 v{vL16}, 4, v2
    v_add_u32 v{vL18}, 2, v{vL16}
    s_lshl_b32 s36, s100, 12           ; c2*4096
    v_add_u32 v28, {A2_KV+4096}, v{vL16}
    v_and_b32 v29, 16, v{vL16}
    v_and_b32 v30, 32, v{vL16}
    v_mul_u32_u24 v30, {A2_W1//32}, v30
    v_add_u32 v29, v29, v30
    v_cmp_gt_u32 vcc, 32, v2
    v_cndmask_b32 v28, v29, v28, vcc
    v_add_u32 v28, s101, v28
    v_mov_b32 v80, 0
    v_mov_b32 v81, 0
    v_mov_b32 v82, 0
    s_lshl_b32 s30, s30, 16
    v_mov_b32 v29, s30
    v_and_b32 v30, 35, v2
    v_cmp_eq_u32 vcc, 35, v30
    v_cndmask_b32 v83, 0, v29, vcc
    s_waitcnt vmcnt({8+nA+8})
    s_barrier                          ; B_14
    s_waitcnt vmcnt({nA+8})
    s_barrier                          ; B_15
    s_barrier                          ; B_16""")
    stamp(1)
    nt = " nt" if OPT["sknt"] else ""
    a(f"s_add_u32 m0, s101, 32")
    for i in range(4): a(f"buffer_load_dwordx4 v{vL16}, {S(sSK)}, s36 offen offset:{1024*i}{nt} lds")
    a(f"s_add_u32 m0, s101, {A2_W1+32}")
    for i in range(4): a(f"buffer_load_dwordx4 v{vL18}, {S(sSK)}, s36 offen offset:{1024*i}{nt} lds")
    a("ds_write_b128 v28, v[80:83]")
    WU, KU, KS = 84, 100, 144
    a(f"s_waitcnt vmcnt({nA - 2 + 16})")
    for c in range(4):
        for tau in range(4):
            src = SHR + 2 * c + (tau >> 1)
            a(f"v_and_b32 v{WU+4*tau+c}, 0xffff0000, v{src}" if tau & 1 else f"v_lshlrev_b32 v{WU+4*tau+c}, 16, v{src}")
    a(f"s_waitcnt vmcnt({9 + 16})")
    def unpack(d, s):
        a(f"""v_lshlrev_b32 v{d}, 16, v{s}
        v_and_b32 v{d+1}, 0xffff0000, v{s}
        v_lshlrev_b32 v{d+2}, 16, v{s+1}
        v_and_b32 v{d+3}, 0xffff0000, v{s+1}""")
    for r in range(11): unpack(KU + 4 * r, KR + 2 * r)
    for tau in range(4):
        for r in range(8):
            for p in range(2):
                d = KS + 4 * r + 2 * p; kk = KU + 4 * (r + 3 - tau) + 2 * p; w = WU + 4 * tau + 2 * p
                if tau == 0: a(f"v_pk_mul_f32 v[{d}:{d+1}], v[{kk}:{kk+1}], v[{w}:{w+1}]")
                else: a(f"v_pk_fma_f32 v[{d}:{d+1}], v[{kk}:{kk+1}], v[{w}:{w+1}], v[{d}:{d+1}]")
    a(f"s_waitcnt vmcnt(16)")
    for r in range(8): unpack(KU + 4 * r, VR + 2 * r)
    for r in range(8):
        for p in range(2):
            d = KS + 4 * r + 2 * p; kk = KU + 4 * r + 2 * p
            a(f"v_pk_mul_f32 v[{d}:{d+1}], v[{d}:{d+1}], v[{kk}:{kk+1}]")
    a(f"""v_sub_u32 v28, 2040, v{vT0}
    v_lshlrev_b32 v28, 1, v28
    v_lshl_add_u32 v28, v{vCH0}, 12, v28""")
    for c in range(4):
        for d in range(4):
            a(f"v_cvt_pk_bf16_f32 v{40+4*c+d}, v{KS+4*(7-2*d)+c}, v{KS+4*(6-2*d)+c}")
        a(f"buffer_store_dwordx4 {V(40+4*c,4)}, v28, {S(sKVT)}, {so[c]} offen sc1")
    nonce_fix("L", vN, vZero, sDBG)
    AAD, BAD, DF = 28, 32, 36
    a(f"""s_lshl_b32 s10, s4, 2
    s_add_u32 s12, s10, s8
    s_lshl_b32 s12, s12, 5
    s_add_u32 s12, s12, s5
    s_lshl_b32 s12, s12, 3
    s_lshr_b32 s14, s5, 3
    s_add_u32 s10, s10, s14
    s_lshl_b32 s10, s10, 8
    v_and_b32 v56, 31, v2
    v_lshl_add_u32 v57, v56, 3, s10
    s_lshl_b32 s10, s35, 3
    s_add_u32 s10, s10, 8192
    v_lshl_add_u32 v25, v56, 3, s10
    v_and_b32 v58, 15, v2              ; i / n
    v_lshrrev_b32 v59, 4, v2           ; kg
    v_lshlrev_b32 v60, 1, v58
    v_lshlrev_b32 v61, 4, v59
    v_sub_u32 v60, v60, v61
    v_and_b32 v62, 1, v58
    v_mov_b32 v63, {A2_W1+48}
    v_cmp_eq_u32 vcc, 1, v62
    v_cndmask_b32 v63, v63, 50, vcc
    v_add3_u32 v{AAD}, v60, v63, s101
    v_add_u32 v{AAD+1}, 1024, v{AAD}
    v_add_u32 v{AAD+2}, 2048, v{AAD}
    v_add_u32 v{AAD+3}, 3072, v{AAD}
    v_lshl_add_u32 v60, v58, 5, v61
    s_add_u32 s10, s101, {A2_KV+528}
    v_sub_u32 v{BAD}, s10, v60
    s_add_u32 s10, s101, {A2_KV}
    v_add_u32 v33, s10, v{vL16}
    s_bitcmp1_b32 s100, 0
    s_cselect_b32 s10, 16, 0
    s_lshr_b32 s31, s31, s10
    s_and_b32 s31, s31, 0xffff
    v_lshlrev_b32 v60, 3, v59
    v_sub_u32 v60, v60, v58
    v_add_u32 v60, -9, v60             ; e = 15 - i - 24 + 8kg
    v_and_b32 v61, 1, v60
    v_lshlrev_b32 v61, 4, v61
    v_lshlrev_b32 v61, v61, s31
    v_ashrrev_i32 v60, 1, v60""")
    for d in range(4):
        a(f"v_cmp_eq_u32 vcc, {d}, v60\nv_cndmask_b32 v{DF+d}, 0, v61, vcc")
    a(f"""v_and_b32 v60, 1, v59
    v_lshlrev_b32 v60, 9, v60
    v_lshl_add_u32 v60, v58, 5, v60
    v_lshrrev_b32 v61, 1, v59
    v_lshl_add_u32 v34, v61, 4, v60
    v_mov_b32 v61, 1000
    s_waitcnt vmcnt(0)
    s_mov_b64 exec, 1
    buffer_store_dwordx2 v[{vN}:{vN+1}], v{vZero}, {S(sFL)}, s12 offen sc1
    s_mov_b64 exec, -1
    ds_write_b32 v22, v61""")
    stamp(2)
    srd(sQ, "q", 4 << 20); srd(sOUT, "out", 16 << 20)
    poll("LK", 58, 57, sFL, vN)
    stamp(3)
    for i in range(4): a(f"buffer_load_dwordx4 {V(64+4*i,4)}, v{vL16}, {S(sKVT)}, s36 offen offset:{1024*i} sc1")
    QR = 40
    nt = " nt" if OPT["qnt"] else ""
    for r in range(8):
        a(f"buffer_load_dwordx2 {V(QR+2*r,2)}, v{vK}, {S(sQ)}, {so[r>>1]} offen offset:{(r&1)*2048}{nt}")
    ACC, S0, S1 = 96, 128, 192
    def areads(s, rl):
        l = []
        for q in range(8):
            f = s + 4 * q; o = 128 * (q & 1) + 16 * rl
            l += [f"ds_read2_b32 {V(f,2)}, v{AAD+(q>>1)} offset0:{o} offset1:{o+1}",
                  f"ds_read2_b32 {V(f+2,2)}, v{AAD+(q>>1)} offset0:{o+2} offset1:{o+3}"]
        return l
    def breads(s, rl):
        return [f"ds_read_b128 {V(s+32+4*q,4)}, v{BAD} offset:{64*rl+512*(7-q)}" for q in range(8)]
    for s in areads(S0, 0): a(s)
    for i in range(4):
        a(f"s_waitcnt vmcnt({11-i})\nds_write_b128 v33, {V(64+4*i,4)} offset:{1024*i}")
    for s in breads(S0, 0): a(s)
    if OPT["lprio"]: a("s_setprio 0")
    a("s_mov_b32 s15, 0\ns_waitcnt lgkmcnt(0)")
    stamp(4)
    for T in range(8):
        a(f"v_mfma_f32_16x16x32_bf16 {V(ACC+4*T,4)}, {V(DF,4)}, {V(S0+32+4*T,4)}, 0")
    a.label("L_conv")
    for half in range(2):
        cur, nxt = (S0, S1) if half == 0 else (S1, S0)
        ar, br = areads(nxt, half + 1), breads(nxt, half + 1)
        rd = []
        for q in range(8): rd += [ar[2 * q], ar[2 * q + 1], br[q]]
        n = 0
        for q in range(8):
            for u in range(8 - q):
                c = ACC + 4 * (q + u)
                a(f"v_mfma_f32_16x16x32_bf16 {V(c,4)}, {V(cur+4*q,4)}, {V(cur+32+4*u,4)}, {V(c,4)}")
                if n < 24: a(rd[n])
                if half == 1 and 26 <= n < 31: a(f"v_add_u32 v{AAD+n-26}, 128, v{AAD+n-26}")
                n += 1
        a("s_waitcnt lgkmcnt(0)")
    a("""s_add_u32 s15, s15, 1
    s_cmp_lt_u32 s15, 4
    s_cbranch_scc1 L_conv""")
    stamp(5)
    for tp in range(4):
        q = 64 + 4 * tp
        for o in range(2):
            c = ACC + 4 * (2 * tp + o)
            a(f"v_cvt_pk_bf16_f32 v{q+2*o}, v{c}, v{c+1}\nv_cvt_pk_bf16_f32 v{q+2*o+1}, v{c+2}, v{c+3}")
    for tp in range(4):
        q = 64 + 4 * tp
        a(f"""v_permlane16_swap_b32 v{q}, v{q+2}
        v_permlane16_swap_b32 v{q+1}, v{q+3}
        buffer_store_dwordx4 {V(q,4)}, v34, {S(sZT)}, s36 offen offset:{1024*tp} sc1""")
    QU = 128
    a(f"""s_lshl_b32 s12, s100, 3
    s_add_u32 s12, s12, 8192
    v_lshlrev_b32 v28, 1, v{vT0}
    v_lshl_add_u32 v28, v{vCH0}, 12, v28
    v_lshlrev_b32 v29, 2, v{vCH0}
    v_lshl_add_u32 v29, v{vT0}, 13, v29       ; out address
    s_waitcnt vmcnt(0)
    s_mov_b64 exec, 1
    buffer_store_dwordx2 v[{vN}:{vN+1}], v{vZero}, {S(sFL)}, s12 offen sc1
    s_mov_b64 exec, -1""")
    stamp(6)
    for r in range(8): unpack(QU + 4 * r, QR + 2 * r)
    poll("LZ", 58, 25, sFL, vN)
    stamp(7)
    for c in range(4): a(f"buffer_load_dwordx4 {V(64+4*c,4)}, v28, {S(sZT)}, {so[c]} offen sc1")
    ZU = 160
    a("s_waitcnt vmcnt(0)")
    stamp(8)
    nt = " nt" if OPT["outnt"] else ""
    for r in range(8):
        for c in range(4):
            src = 64 + 4 * c + (r >> 1)
            a(f"v_and_b32 v{ZU+4*r+c}, 0xffff0000, v{src}" if r & 1 else f"v_lshlrev_b32 v{ZU+4*r+c}, 16, v{src}")
        for p in range(2):
            d = ZU + 4 * r + 2 * p; qq = QU + 4 * r + 2 * p
            a(f"v_pk_mul_f32 v[{d}:{d+1}], v[{d}:{d+1}], v[{qq}:{qq+1}]")
        a(f"""s_mov_b32 s10, {r*8192}
        buffer_store_dwordx4 {V(ZU+4*r,4)}, v29, {S(sOUT)}, s10 offen{nt}""")
    a("s_waitcnt vmcnt(0)")
    stamp(9)
    stamp_out()
    a("s_endpgm")

def main():
    kname = "y_kernel" if OPT["list"] else NAME + "_kernel"
    a.l += [f".globl {kname}", ".p2align 8", f".type {kname},@function"]
    a.label(kname)
    a("""s_cmp_ge_u32 s2, 256
    s_cbranch_scc1 Y_done
    s_load_dwordx16 s[16:31], s[0:1], 0
    s_load_dwordx16 s[32:47], s[0:1], 64
    s_load_dwordx4 s[48:51], s[0:1], 128
    v_lshrrev_b32 v1, 6, v0
    v_and_b32 v2, 63, v0
    s_and_b32 s4, s2, 7
    v_readfirstlane_b32 s3, v1
    s_lshr_b32 s5, s2, 3
    s_and_b32 s6, s4, 3
    s_lshl_b32 s6, s6, 2
    s_and_b32 s7, s5, 3
    s_add_u32 s6, s6, s7            ; mt
    s_and_b32 s7, s4, 4
    s_lshl_b32 s7, s7, 1
    s_lshr_b32 s8, s5, 2
    s_add_u32 s7, s7, s8            ; nt
    s_cmp_lt_u32 s3, 4
    s_cbranch_scc1 Y_G""")
    role_L()
    a.label("Y_G")
    role_G()
    a.label("Y_done")
    a("s_endpgm")
    body = a.finish()
    out = []
    for ln in open("/code/" + NAME + ".s.ref").read().split("\n"):
        if ln.startswith("; @launch") or ln.startswith(".amdgcn"): break
        if ln.startswith("; Override") or ln.startswith("; grid="): continue
        out.append(ln)
    if OPT["list"]: out.append(f"; @launch kernel={kname} grid=(256,1,1) block=(512,1,1) lds=163840")
    else: out.append("; @launch grid=(256,1,1) block=(512,1,1) lds=163840")
    out += ['.amdgcn_target "amdgcn-amd-amdhsa--gfx950"', ".text"] + body
    out.append(f""".section .rodata,"a"
.p2align 6
.amdhsa_kernel {kname}
  .amdhsa_next_free_vgpr 256
  .amdhsa_next_free_sgpr 102
  .amdhsa_accum_offset 256
  .amdhsa_group_segment_fixed_size 0
  .amdhsa_kernarg_size 144
  .amdhsa_user_sgpr_count 2
  .amdhsa_user_sgpr_kernarg_segment_ptr 1
  .amdhsa_system_sgpr_workgroup_id_x 1
.end_amdhsa_kernel""")
    open(OPT["out"], "w").write("\n".join(out) + "\n")
main()
```

```python
import sys
sys.path.insert(0, "tools")
from asmlib import *
NAME = "concat_heads__ssm_conv_h3__ssm_conv_s5__prompt"
OPT = dict(out="/code/" + NAME + ".s", stamp=0, list=0, barpos=14, flagk=0, kvnt=1, qnt=1, sknt=1, outnt=0, gp1=0, gp2=3, gp3=1, lp1=2, lp2=0, lp3=0, lp4=3, wp=12, zsleep=0,
           cpf=0, spin=20000, noA=0, lbsleep=0, psleep=0, kst=3, kst2=0, c4=1, g1x=0, clk=0, ltr=0, hsc=1, stopA=0, fkstep=4, cpos=2, fkw=13, zps=4, gp0=3, chain=1, scal=62, noq=0, lmode=1, gsl=0, zw=30, qpos=1, ow=0, gtr=0, rsp=2, pace=0, nl=4, dep=3, wev=1, fr=13, dep0=7, nd=8)
for x in sys.argv[1:]:
    k, v = x.split("=")
    OPT[k] = v if k == "out" else int(v)
STAMP = OPT["stamp"]
WS_KVT, WS_ZT, WS_HF, WS_E, WS_FL, WS_ST = 0, 4 << 20, 8 << 20, 16 << 20, 17 << 20, 64 << 20
P = dict(q=16, k=18, v=20, shift=22, ssmk=24, ssmD=26, x=28, Lre=30, Lim=32, Bre=34, Bim=36, Cre=38, Cim=40,
         logdt=42, Dskip=44, out=46, dbg=48, ws=50)
LDSF = 163840 - 64
A2_BASE, A2_W1, A2_KV, A2_WB = 98304, 4160, 8320, 12928
a = Asm()

def srd(d, ptr, nbytes, off=0):
    b = P[ptr]
    if off:
        a(f"s_add_u32 s{d}, s{b}, {off}\ns_addc_u32 s{d+1}, s{b+1}, 0")
    else:
        a(f"s_mov_b32 s{d}, s{b}\ns_mov_b32 s{d+1}, s{b+1}")
    a(f"s_mov_b32 s{d+2}, {nbytes}\ns_mov_b32 s{d+3}, 0x00020000")
def srd_sel(d, p0, p1, nbytes):
    a(f"""s_cselect_b32 s{d}, s{P[p1]}, s{P[p0]}
    s_cselect_b32 s{d+1}, s{P[p1]+1}, s{P[p0]+1}
    s_mov_b32 s{d+2}, {nbytes}
    s_mov_b32 s{d+3}, 0x00020000""")
def S(d): return f"s[{d}:{d+3}]"
def V(d, n): return f"v[{d}:{d+n-1}]"
XST = [0, 0]
SCAL = [0]
def scal(bit): SCAL[0] = OPT['scal'] & bit
def pkop(op, d, x, y):
    if SCAL[0]: return f"v_{op}_f32 v{d}, v{x}, v{y}\nv_{op}_f32 v{d+1}, v{x+1}, v{y+1}"
    return f"v_pk_{op}_f32 v[{d}:{d+1}], v[{x}:{x+1}], v[{y}:{y+1}]"
def streg(i): return 84 + 2 * i if i < 8 else XST[i - 8]
def stamp(i):
    if STAMP: a(f"{'s_memtime' if OPT['clk'] else 's_memrealtime'} s[{streg(i)}:{streg(i)+1}]")
def savecnt(i):
    if STAMP: a(f"s_mov_b32 s{38+i}, s15")
def stamp_out():
    if not STAMP: return
    srd(52, "ws", 1 << 20, WS_ST)
    a("""s_waitcnt vmcnt(0) lgkmcnt(0)
    s_lshl_b32 s8, s2, 3
    s_add_u32 s8, s8, s3
    s_lshl_b32 s8, s8, 6
    v_mov_b32 v12, s8
    s_getreg_b32 s8, hwreg(HW_REG_XCC_ID)
    v_mov_b32 v10, s8
    v_mov_b32 v11, s15
    s_mov_b64 exec, 1""")
    for i in range(10): a(f"v_mov_b32 v{i}, s{streg(i)}")
    a("""buffer_store_dwordx4 v[0:3], v12, s[52:55], 0 offen
    buffer_store_dwordx4 v[4:7], v12, s[52:55], 0 offen offset:16
    buffer_store_dwordx4 v[8:11], v12, s[52:55], 0 offen offset:32
    v_mov_b32 v16, s38
    v_mov_b32 v17, s39
    v_mov_b32 v18, s40
    v_mov_b32 v19, s41
    buffer_store_dwordx4 v[16:19], v12, s[52:55], 0 offen offset:48
    s_waitcnt vmcnt(0)""")

def stopA(n, nxt):
    if OPT["stopA"] == n:
        a("s_waitcnt vmcnt(0) lgkmcnt(0)")
        for i in range(nxt, 10): stamp(i)
        stamp_out()
        a("s_endpgm")
def cmul(d, x, y, c=None):
    (dr, di), (xr, xi), (yr, yi) = d, x, y
    if c is None:
        a(f"v_mul_f32 v{dr}, v{xr}, v{yr}\nv_mul_f32 v{di}, v{xr}, v{yi}")
    else:
        a(f"v_fma_f32 v{dr}, v{xr}, v{yr}, v{c[0]}\nv_fma_f32 v{di}, v{xr}, v{yi}, v{c[1]}")
    a(f"v_fma_f32 v{dr}, -v{xi}, v{yi}, v{dr}\nv_fmac_f32 v{di}, v{xi}, v{yr}")
def pk(d, bc, sel, x, c=None, neg=False, swapx=False, neglo=False):
    xs, xh = (1, 0) if swapx else (0, 1)
    nl = 1 if (neg or neglo) else 0
    nh = 1 if neg else 0
    if SCAL[0]:
        o = []
        for h, xx, n_ in ((0, xs, nl), (1, xh, nh)):
            m = "-" if n_ else ""
            if c is None: o.append(f"v_mul_f32 v{d+h}, {m}v{bc+sel}, v{x+xx}")
            elif c == d and not n_: o.append(f"v_fmac_f32 v{d+h}, v{bc+sel}, v{x+xx}")
            else: o.append(f"v_fma_f32 v{d+h}, {m}v{bc+sel}, v{x+xx}, v{c+h}")
        return "\n".join(o)
    if c is None:
        s = f"v_pk_mul_f32 v[{d}:{d+1}], v[{bc}:{bc+1}], v[{x}:{x+1}] op_sel:[{sel},{xs}] op_sel_hi:[{sel},{xh}]"
        if nl or nh: s += f" neg_lo:[{nl},0] neg_hi:[{nh},0]"
    else:
        s = f"v_pk_fma_f32 v[{d}:{d+1}], v[{bc}:{bc+1}], v[{x}:{x+1}], v[{c}:{c+1}] op_sel:[{sel},{xs},0] op_sel_hi:[{sel},{xh},1]"
        if nl or nh: s += f" neg_lo:[{nl},0,0] neg_hi:[{nh},0,0]"
    return s
def pkcmul(d, L, x, c=None, conjL=False):
    xr, xi = x if isinstance(x, tuple) else (x, x + 2)
    dr, di = d if isinstance(d, tuple) else (d, d + 2)
    cr, ci = (None, None) if c is None else (c if isinstance(c, tuple) else (c, c + 2))
    return [pk(dr, L, 0, xr, cr), pk(di, L, 0, xi, ci), pk(dr, L, 1, xi, dr, neg=not conjL), pk(di, L, 1, xr, di, neg=conjL)]
def capture(fn):
    g = globals(); old = g["a"]; sv = Asm(); g["a"] = sv
    fn()
    g["a"] = old
    return sv.l
def interleave(*lists):
    n = max(len(l) for l in lists)
    for i in range(0, n, 2):
        for l in lists:
            for s in l[i:i + 2]: a(s)

def poll(tag, vdst, vaddr, srdn, vnonce, cnt="s15"):
    a(f"s_mov_b32 {cnt}, 0")
    a.label(f"{tag}_poll")
    a(f"""buffer_load_dwordx2 v[{vdst}:{vdst+1}], v{vaddr}, {S(srdn)}, 0 offen sc1
    s_waitcnt vmcnt(0)
    v_cmp_ne_u64 vcc, v[{vdst}:{vdst+1}], v[{vnonce}:{vnonce+1}]
    s_cbranch_vccz {tag}_ok
    {"s_sleep " + str(OPT['psleep']) if OPT['psleep'] else ""}
    s_add_u32 {cnt}, {cnt}, 1
    s_cmp_lt_u32 {cnt}, {OPT['spin']}
    s_cbranch_scc1 {tag}_poll""")
    a.label(f"{tag}_ok")
def nonce_fix(tag, vn, vzero, srdn, cnt="s15"):
    a(f"s_mov_b32 {cnt}, 0")
    a.label(f"{tag}_np")
    a(f"""v_cmp_eq_u32 vcc, 0, v{vn}
    s_cbranch_vccz {tag}_nok
    buffer_load_dwordx2 v[{vn}:{vn+1}], v{vzero}, {S(srdn)}, 0 offen sc1
    s_add_u32 {cnt}, {cnt}, 1
    s_waitcnt vmcnt(0)
    s_cmp_lt_u32 {cnt}, {OPT['spin']}
    s_cbranch_scc1 {tag}_np""")
    a.label(f"{tag}_nok")

def lds_wait(tag, vaddr, off, need, r, cnt="s15", sleep=1):
    a(f"s_mov_b32 {cnt}, 0")
    a.label(f"{tag}_w")
    a(f"""ds_read_b128 {V(r,4)}, v{vaddr} offset:{off}
    s_waitcnt lgkmcnt(0)
    v_min3_u32 v{r}, v{r}, v{r+1}, v{r+2}
    v_min_u32 v{r}, v{r}, v{r+3}
    v_cmp_gt_u32 vcc, {need}, v{r}
    s_cbranch_vccz {tag}_ok
    {"s_sleep " + str(sleep) if sleep else ""}
    s_add_u32 {cnt}, {cnt}, 1
    s_cmp_lt_u32 {cnt}, {OPT['spin']*8}
    s_cbranch_scc1 {tag}_w""")
    a.label(f"{tag}_ok")
def lds_wait1(tag, vaddr, off, need, r, cnt="s15", sleep=1):
    a(f"s_mov_b32 {cnt}, 0")
    a.label(f"{tag}_w")
    a(f"""ds_read_b32 v{r}, v{vaddr} offset:{off}
    s_waitcnt lgkmcnt(0)
    v_cmp_gt_u32 vcc, {need}, v{r}
    s_cbranch_vccz {tag}_ok
    {"s_sleep " + str(sleep) if sleep else ""}
    s_add_u32 {cnt}, {cnt}, 1
    s_cmp_lt_u32 {cnt}, {OPT['spin']*8}
    s_cbranch_scc1 {tag}_w""")
    a.label(f"{tag}_ok")
def unpack(d, s):
    a(f"""v_lshlrev_b32 v{d}, 16, v{s}
    v_and_b32 v{d+1}, 0xffff0000, v{s}
    v_lshlrev_b32 v{d+2}, 16, v{s+1}
    v_and_b32 v{d+3}, 0xffff0000, v{s+1}""")
def prio(k):
    a(f"s_setprio {OPT[k]}")
def dma_voffsets(d, srow, rowmul_lane, step, t0, t1):
    a(f"""v_add_u32 v{t0}, {srow}, v{t0}
    v_lshlrev_b32 v{t0}, 11, v{t0}
    v_lshrrev_b32 v{t1}, 4, v2
    v_xor_b32 v{t1}, v{t1}, v2
    v_and_b32 v{t1}, 7, v{2 if OPT["g1x"] & 8 else t1}
    v_lshl_add_u32 v{d}, v{t1}, 4, v{t0}
    v_xor_b32 v{d+1}, 64, v{d}
    v_add_u32 v{d+1}, {step-1024}, v{d+1}
    v_add_u32 v{d+2}, {2*(step-1024)}, v{d}
    v_add_u32 v{d+3}, {2*(step-1024)}, v{d+1}""")

def role_G():
    XST[:] = [24, 26]
    sT0, sT1, sT2, sE, sHF, sFL, sDBG, sC = 52, 56, 60, 64, 68, 72, 76, 80
    vM, vH, vCH = 3, 4, 5
    L1, C2, L8, L16, L32, L64, L128 = 6, 8, 12, 14, 16, 18, 20
    vX, vZero, vD, vE, vL16, vL16b = 22, 23, 24, 25, 26, 27
    GR = 28
    vN = 30
    RA = 32
    pr = lambda x: (x, x + 1)
    vF, vFA, vT, FLG = 10, 11, 52, 48
    prio("gp0")
    LM = 1
    aT0, aCH0, aK, aKH, aSH, aST = 56, 57, 58, 59, 60, 61
    VR, SHR, KR, KS, WU, KU, PKO = 128, 144, 152, 144, 176, 192, 236
    a(f"""s_lshl_b32 s10, s5, 6
    v_and_b32 v{aT0}, 56, v2
    v_add_u32 v{aT0}, s10, v{aT0}
    s_lshl_b32 s10, s4, 7
    s_lshl_b32 s12, s3, 5
    s_add_u32 s10, s10, s12            ; 128xcd + 32w
    v_and_b32 v62, 7, v2
    v_lshl_add_u32 v{aCH0}, v62, 2, s10
    v_lshlrev_b32 v62, 1, v{aCH0}
    v_lshl_add_u32 v{aK}, v{aT0}, 11, v62
    v_subrev_u32 v{aKH}, 6144, v{aK}
    v_bfrev_b32 v62, 1
    v_cmp_eq_u32 vcc, 0, v{aT0}
    v_cndmask_b32 v{aKH}, v{aKH}, v62, vcc
    v_lshlrev_b32 v{aSH}, 3, v{aCH0}
    s_movk_i32 s12, 4096
    s_movk_i32 s13, 8192
    s_movk_i32 s14, 12288""")
    a(f"""v_and_b32 v{vM}, 31, v2
    v_lshrrev_b32 v{vH}, 5, v2
    s_lshr_b32 s8, s3, 1            ; wm
    s_and_b32 s9, s3, 1             ; wn
    s_lshl_b32 s10, s7, 6
    s_lshl_b32 s11, s9, 5
    s_add_u32 s10, s10, s11
    v_add_u32 v{vCH}, s10, v{vM}
    v_lshlrev_b32 v48, 1, v{vCH}
    v_mov_b32 v{vZero}, 0
    s_lshl_b32 s10, s7, 7
    v_lshl_add_u32 v49, v{vM}, 2, s10     ; (64nt+2n)*2
    s_lshl_b32 s10, s3, 2
    s_add_u32 s10, s10, {LDSF}
    v_mov_b32 v{vF}, s10
    v_mov_b32 v{vFA}, {LDSF}
    ds_write_b32 v{vF}, v{vZero}
    s_waitcnt lgkmcnt(0)
    s_barrier""")
    srd(sDBG, "dbg", 256)
    a(f"""s_or_b32 s10, s2, s3
    s_cmp_eq_u32 s10, 0
    s_cbranch_scc0 G_nononce
    s_memrealtime s[10:11]
    s_waitcnt lgkmcnt(0)
    s_or_b32 s10, s10, 1
    v_mov_b32 v54, s10
    v_mov_b32 v55, s11
    s_mov_b64 exec, 1
    buffer_store_dwordx2 v[54:55], v{vZero}, {S(sDBG)}, 0 offen sc1
    s_mov_b64 exec, -1""")
    a.label("G_nononce")
    so = ["0", "s12", "s13", "s14"]
    nt = " nt" if OPT["kvnt"] else ""
    srd(72, "shift", 8192); srd(64, "k", 0 if OPT["noA"] else 4 << 20); srd(68, "v", 0 if OPT["noA"] else 4 << 20)
    a(f"""buffer_load_dwordx4 {V(SHR,4)}, v{aSH}, {S(72)}, 0 offen
    buffer_load_dwordx4 {V(SHR+4,4)}, v{aSH}, {S(72)}, 0 offen offset:16""")
    for r in range(8):
        a(f"buffer_load_dwordx2 {V(KR+6+2*r,2)}, v{aK}, {S(64)}, {so[r>>1]} offen offset:{(r&1)*2048}{nt}")
    for r in range(3):
        a(f"buffer_load_dwordx2 {V(KR+2*r,2)}, v{aKH}, {S(64)}, {so[r>>1]} offen offset:{(r&1)*2048}{nt}")
    for r in range(8):
        a(f"buffer_load_dwordx2 {V(VR+2*r,2)}, v{aK}, {S(68)}, {so[r>>1]} offen offset:{(r&1)*2048}{nt}")
    srd(sT0, "logdt", 2048)
    a(f"buffer_load_ushort v12, v48, {S(sT0)}, 0 offen")
    a(f"s_mov_b32 s{sT0}, s{P['Lre']}\ns_mov_b32 s{sT0+1}, s{P['Lre']+1}\nbuffer_load_ushort v13, v48, {S(sT0)}, 0 offen")
    a(f"s_mov_b32 s{sT0}, s{P['Lim']}\ns_mov_b32 s{sT0+1}, s{P['Lim']+1}\nbuffer_load_ushort v14, v48, {S(sT0)}, 0 offen")
    a(f"s_mov_b32 s{sT0}, s{P['Dskip']}\ns_mov_b32 s{sT0+1}, s{P['Dskip']+1}\nbuffer_load_dword v{vD}, v49, {S(sT0)}, 0 offen")
    srd(sT1, "ws", 0 if OPT["noA"] else 4 << 20, WS_KVT)
    a(f"""s_lshl_b32 s16, s4, 2
    s_add_u32 s16, s16, s3
    s_lshl_b32 s16, s16, 5
    s_add_u32 s16, s16, s5
    s_lshl_b32 s16, s16, 3
    v_sub_u32 v{aST}, 2040, v{aT0}
    v_lshlrev_b32 v{aST}, 1, v{aST}
    v_lshl_add_u32 v{aST}, v{aCH0}, 12, v{aST}""")
    srd(sT0, "x", 4 << 20); srd(sT2, "out", 16 << 20)
    srd(sE, "ws", 33 * 16384, WS_E); srd(sHF, "ws", 8 << 20, WS_HF); srd(sFL, "ws", 24576, WS_FL)
    a("s_cmp_eq_u32 s9, 1")
    srd_sel(sC, "Cre", "Cim", 2 << 20)
    a(f"""s_lshl_b32 s10, s6, 7
    s_lshl_b32 s11, s3, 5
    s_add_u32 s10, s10, s11
    v_lshl_add_u32 v50, v{vH}, 2, s10
    v_lshl_add_u32 v{vX}, v50, 11, v49
    v_xor_b32 v50, 1, v{vH}
    v_lshlrev_b32 v50, 14, v50
    v_lshl_add_u32 v{vE}, v{vCH}, 4, v50
    v_lshlrev_b32 v{vL16}, 4, v2
    v_add_u32 v{vL16b}, 4096, v{vL16}
    v_lshrrev_b32 v50, 1, v{vM}
    v_and_b32 v50, 7, v50
    v_xor_b32 v50, v50, v{vH}
    v_lshlrev_b32 v50, 4, v50
    v_lshl_add_u32 v50, v{vM}, 7, v50
    s_lshl_b32 s10, s8, 13
    s_lshl_b32 s11, s9, 13
    s_add_u32 s11, s11, 16384
    v_add_u32 v{RA}, s10, v50
    v_add_u32 v{RA+4}, s11, v50""")
    for ks in range(1, 4):
        a(f"v_xor_b32 v{RA+ks}, {32*ks}, v{RA}\nv_xor_b32 v{RA+4+ks}, {32*ks}, v{RA+4}")
    for i in range(8):
        a(f"v_add_u32 v{RA+8+i}, 65536, v{RA+i}")
    for i in range(64): a(f"v_mov_b32 v{64+i}, 0")
    stamp(0)
    a("s_waitcnt vmcnt(23)")
    for c in range(4):
        for tau in range(4):
            src = SHR + 2 * c + (tau >> 1)
            a(f"v_and_b32 v{WU+4*tau+c}, 0xffff0000, v{src}" if tau & 1 else f"v_lshlrev_b32 v{WU+4*tau+c}, 16, v{src}")
    a("s_waitcnt vmcnt(12)")
    for r in range(11): unpack(KU + 4 * r, KR + 2 * r)
    for tau in range(4):
        for r in range(8):
            for p in range(2):
                d = KS + 4 * r + 2 * p; kk = KU + 4 * (r + 3 - tau) + 2 * p; w = WU + 4 * tau + 2 * p
                if tau == 0: a(f"v_pk_mul_f32 v[{d}:{d+1}], v[{kk}:{kk+1}], v[{w}:{w+1}]")
                else: a(f"v_pk_fma_f32 v[{d}:{d+1}], v[{kk}:{kk+1}], v[{w}:{w+1}], v[{d}:{d+1}]")
    a("s_waitcnt vmcnt(4)")
    for r in range(8): unpack(KU + 4 * r, VR + 2 * r)
    for r in range(8):
        for p in range(2):
            d = KS + 4 * r + 2 * p; kk = KU + 4 * r + 2 * p
            a(f"v_pk_mul_f32 v[{d}:{d+1}], v[{d}:{d+1}], v[{kk}:{kk+1}]")
    for c in range(4):
        for d in range(4):
            a(f"v_cvt_pk_bf16_f32 v{PKO+4*c+d}, v{KS+4*(7-2*d)+c}, v{KS+4*(6-2*d)+c}")
        a(f"buffer_store_dwordx4 {V(PKO+4*c,4)}, v{aST}, {S(sT1)}, {so[c]} offen sc1")
    prio("gp1")
    XR = 224
    def coef_code():
        t = 128
        a(f"""v_lshlrev_b32 v{t+5}, 16, v12
        v_lshlrev_b32 v{t+6}, 16, v13
        v_lshlrev_b32 v{t+7}, 16, v14
        v_mul_f32 v{t+5}, 0x3fb8aa3b, v{t+5}
        v_exp_f32 v{t+5}, v{t+5}
        v_mul_f32 v{t+12}, v{t+6}, v{t+6}
        v_cvt_pk_bf16_f32 v{t+5}, v{t+5}, v{t+5}
        v_fmac_f32 v{t+12}, v{t+7}, v{t+7}
        v_lshlrev_b32 v{t+5}, 16, v{t+5}
        v_rcp_f32 v{t+12}, v{t+12}
        v_mul_f32 v{t+8}, v{t+5}, v{t+6}
        v_mul_f32 v{t+9}, v{t+5}, v{t+7}
        v_mul_f32 v{t+8}, 0x3fb8aa3b, v{t+8}
        v_exp_f32 v{t+8}, v{t+8}
        v_mul_f32 v{t+9}, 0.15915494, v{t+9}
        v_cos_f32 v{t+10}, v{t+9}
        v_sin_f32 v{t+11}, v{t+9}
        v_add_f32 v{t+12}, v{t+12}, v{t+12}
        v_mul_f32 v{L1}, v{t+8}, v{t+10}
        v_mul_f32 v{L1+1}, v{t+8}, v{t+11}""")
        cmul((t, t + 1), pr(L1), pr(L1)); cmul((t + 2, t + 3), (t, t + 1), (t, t + 1))
        cmul(pr(L8), (t + 2, t + 3), (t + 2, t + 3)); cmul(pr(L16), pr(L8), pr(L8)); cmul(pr(L32), pr(L16), pr(L16))
        a(f"""v_add_f32 v{t+8}, -1.0, v{L1}
        v_mul_f32 v{t+10}, v{t+8}, v{t+6}
        v_fmac_f32 v{t+10}, v{L1+1}, v{t+7}
        v_mul_f32 v{t+11}, v{L1+1}, v{t+6}
        v_fma_f32 v{t+11}, -v{t+8}, v{t+7}, v{t+11}
        v_mul_f32 v{C2}, v{t+10}, v{t+12}
        v_mul_f32 v{C2+1}, v{t+11}, v{t+12}""")
        cmul(pr(L64), pr(L32), pr(L32)); cmul(pr(L128), pr(L64), pr(L64))
    coefl = capture(coef_code)
    def reads(slot, fr):
        o = (slot & 1) * 32768; r = RA + 8 * (slot >> 1)
        l = []
        for ks in range(4):
            f = fr + 16 * ks
            l += [f"ds_read_b128 {V(f,4)}, v{r+ks} offset:{o}", f"ds_read_b128 {V(f+8,4)}, v{r+4+ks} offset:{o}",
                  f"ds_read_b128 {V(f+12,4)}, v{r+4+ks} offset:{o+4096}", f"ds_read_b128 {V(f+4,4)}, v{r+ks} offset:{o+4096}"]
        return l
    def step(n, last=False, extra=None):
        fc, fn = (128, 192) if n % 2 == 0 else (192, 128)
        rd = [] if last else reads((n + 1) & 3, fn)
        for idx in range(16):
            if OPT["gtr"] and idx == 14:
                a("s_memtime s[18:19]")
            if OPT["gtr"] and idx == 1:
                a("s_mov_b32 m0, s12\nv_writelane_b32 v54, s18, m0\nv_writelane_b32 v55, s17, m0")
            ks, mt_, pt = idx >> 2, (idx >> 1) & 1, idx & 1
            c = 64 + 32 * mt_ + 16 * pt; f = fc + 16 * ks
            if not OPT["g1x"] & 1: a(f"v_mfma_f32_32x32x16_bf16 {V(c,16)}, {V(f+4*mt_,4)}, {V(f+8+4*pt,4)}, {V(c,16)}")
            if idx == 0 and not last:
                a(f"""{"s_waitcnt lgkmcnt(0)" if OPT["fr"] >= OPT["wp"] else ""}
                {f"v_min3_u32 v{FLG}, v{FLG}, v{FLG+1}, v{FLG+2}" if LM else ""}
                {f"v_min_u32 v{FLG}, v{FLG}, v{FLG+3}" if LM else ""}
                v_cmp_gt_u32 vcc, s12, v{FLG}
                s_cbranch_vccnz G1_slow{n}""")
                a.label(f"G1_back{n}")
            if idx == 9 and not last and n == (OPT["fkstep"] & 3):
                a(f"s_cmp_eq_u32 s12, {OPT['fkstep']+2}\ns_cbranch_scc1 G1_fk")
                a.label("G1_fkb")
            if not OPT["g1x"] & 2:
                if OPT["rsp"] == 2:
                    for s_ in rd[2 * idx:2 * idx + 2]: a(s_)
                elif OPT["rsp"] == 3:
                    lo = (idx * 3 + 1) // 2; hi = ((idx + 1) * 3 + 1) // 2
                    for s_ in rd[lo:hi]: a(s_)
            if idx == OPT["wp"] and not last:
                a(f"""v_mov_b32 v{vT}, s12
                s_waitcnt lgkmcnt(0)
                ds_write_b32 v{vF}, v{vT}
                s_add_u32 s12, s12, 1""")
            if idx == OPT["fr"] and not last: a(f"ds_read_b128 {V(FLG,4)}, v{vFA} offset:16" if LM else f"ds_read_b32 v{FLG}, v{vFA} offset:{16+4*((n+2)&3)}")
            if extra: extra(idx)
    (lds_wait if LM else lds_wait1)("G_s0", vFA, 16, 1, FLG, sleep=0)
    stamp(1)
    for s_ in reads(0, 128): a(s_)
    a(f"""{f"ds_read_b128 {V(FLG,4)}, v{vFA} offset:16" if LM else f"ds_read_b32 v{FLG}, v{vFA} offset:20"}
    v_mov_b32 v{vT}, 1
    s_mov_b32 s12, 2
    s_waitcnt lgkmcnt(0)
    ds_write_b32 v{vF}, v{vT}""")
    if OPT["gtr"]: a("s_mov_b32 s17, 0\ns_memtime s[18:19]\ns_waitcnt lgkmcnt(0)")
    a.label("G1_loop")
    step(0); step(1); step(2)
    a("""s_cmp_eq_u32 s12, 17
    s_cbranch_scc1 G1_last""")
    step(3)
    a("s_branch G1_loop")
    for n in range(4):
        a.label(f"G1_slow{n}")
        if LM: lds_wait(f"G1_sl{n}", vFA, 16, "s12", FLG, sleep=OPT["gsl"])
        else: lds_wait1(f"G1_sl{n}", vFA, 16 + 4 * ((n + 1) & 3), "s12", FLG, sleep=OPT["gsl"])
        if OPT["gtr"]: a("s_add_u32 s17, s17, s15\ns_add_u32 s17, s17, 1")
        a(f"s_branch G1_back{n}")
    a.label("G1_fk")
    if OPT["nl"] < 4: lds_wait1("G1_fkn", vFA, 40, 1, vT)
    a(f"""ds_read_b64 v[{vN}:{vN+1}], v{vFA} offset:32
    s_waitcnt vmcnt(0) lgkmcnt(0)
    s_mov_b64 exec, 1
    buffer_store_dwordx2 v[{vN}:{vN+1}], v{vZero}, {S(sFL)}, s16 offen sc1
    s_mov_b64 exec, -1
    s_branch G1_fkb""")
    a.label("G1_last")
    def exx(i):
        if i == 0: prio("gp2")
        for x in coefl[4 * i:4 * i + 4]: a(x)
    assert len(coefl) <= 64
    step(15, last=True, extra=exx)
    stamp(2)
    if OPT["gtr"]:
        srd(56, "ws", 1 << 20, WS_ST + (2 << 20))
        a("""s_lshl_b32 s10, s2, 2
        s_add_u32 s10, s10, s3
        s_lshl_b32 s10, s10, 9
        v_lshlrev_b32 v53, 3, v2
        buffer_store_dwordx2 v[54:55], v53, s[56:59], s10 offen""")
    scal(1)
    U = lambda part, m, j, base=64: base + 32 * m + 16 * part + 2 * j
    SS = lambda m, par: 32 + 8 * par + 4 * m
    for j in range(1, 8):
        ls = []
        for m in range(2):
            prev = (U(0, m, 0), U(1, m, 0)) if j == 1 else SS(m, (j - 1) & 1)
            ls.append(pkcmul(SS(m, j & 1), L1, prev, (U(0, m, j), U(1, m, j))))
        interleave(*ls)
    A0, A16 = 40, 44
    for s in pkcmul(A16, L8, A0, A16): a(s)
    cmul((32, 34), pr(L16), (A16, A16 + 2), (A16 + 1, A16 + 3))
    a("""v_mov_b32 v33, v32
    v_mov_b32 v35, v34
    s_lshl_b32 s12, s6, 1
    s_add_u32 s12, s12, s8          ; chunk c
    v_permlane32_swap_b32 v32, v33
    v_permlane32_swap_b32 v34, v35
    s_lshl_b32 s13, s12, 14""")
    cmul((GR, GR + 1), pr(L32), (32, 34), (33, 35))
    a("s_waitcnt lgkmcnt(0)")
    a(f"""s_mov_b32 exec_hi, 0
    buffer_store_dwordx4 {V(GR,4)}, v{vE}, {S(sE)}, s13 offen sc1
    s_cmp_eq_u32 s12, 0
    s_cbranch_scc0 G_pub1
    s_not_b64 exec, exec
    v_mov_b32 v{GR}, 0
    v_mov_b32 v{GR+1}, 0
    buffer_store_dwordx4 {V(GR,4)}, v{vE}, {S(sE)}, 0 offen sc1""")
    a.label("G_pub1")
    a("s_mov_b64 exec, -1")
    stamp(3)
    scal(2)
    for j in range(8):
        ls = []
        for m in range(2):
            ur, ui = U(0, m, j), U(1, m, j); dr, di = ur + 64, ui + 64
            ls.append([pk(dr, C2, 0, ur), pk(di, C2, 0, ui, neg=True), pk(dr, C2, 1, ui, dr, neg=True), pk(di, C2, 1, ur, di, neg=True)])
        interleave(*ls)
    WT = 64
    a(f"""v_cmp_eq_u32 vcc, 1, v{vH}
    v_mov_b32 v36, 1.0
    v_cndmask_b32 v{WT}, v36, v{L64}, vcc
    v_cndmask_b32 v{WT+1}, 0, v{L64+1}, vcc
    v_cndmask_b32 v96, 0, v32, vcc
    v_cndmask_b32 v98, 0, v34, vcc
    v_cndmask_b32 v36, v36, v{L32}, vcc
    v_cndmask_b32 v37, 0, v{L32+1}, vcc""")
    wl = []
    for i in range(1, 16):
        wl += [pk(WT + 2 * i, L128, 0, WT + 2 * i - 2), pk(WT + 2 * i, L128, 1, WT + 2 * i - 2, WT + 2 * i, swapx=True, neglo=True)]
    sv = Asm(); g = globals(); old = g["a"]; g["a"] = sv
    cmul((97, 99), pr(L16), (96, 98), (A16, A16 + 2))
    for s in pkcmul(100, L8, 96, A0): sv(s)
    cmul((104, 106), pr(C2), (36, 37))
    cmul((105, 107), pr(L16), (104, 106))
    for s in pkcmul(108, L8, 104): sv(s)
    for m in range(2):
        ur, ui, dr, di = 96 + 4 * m, 98 + 4 * m, 112 + 4 * m, 114 + 4 * m
        for s in [pk(dr, C2, 0, ur), pk(di, C2, 0, ui, neg=True), pk(dr, C2, 1, ui, dr, neg=True), pk(di, C2, 1, ur, di, neg=True)]: sv(s)
    sv(f"""s_lshl_b32 s13, s3, 13
    s_add_u32 s13, s13, 65536
    v_and_b32 v32, 1, v2
    v_and_b32 v33, 2, v2
    v_lshl_or_b32 v32, v33, 1, v32
    v_bfe_u32 v33, v2, 2, 1
    v_lshl_or_b32 v32, v33, 1, v32      ; f(c)
    v_lshlrev_b32 v33, 2, v{vH}
    v_xor_b32 v32, v32, v33
    v_lshlrev_b32 v32, 4, v32
    v_lshl_add_u32 v32, v{vM}, 7, v32
    v_add_u32 v120, s13, v32
    v_xor_b32 v121, 16, v120
    v_xor_b32 v122, 32, v120
    v_xor_b32 v123, 48, v120
    v_bfe_u32 v32, v2, 2, 2              ; r
    v_lshl_add_u32 v33, v{vH}, 3, v32    ; 8kg + r
    v_lshlrev_b32 v33, 7, v33
    v_and_b32 v34, 1, v32
    v_and_b32 v32, 2, v32
    v_lshl_or_b32 v32, v32, 1, v34       ; f(r), q=0
    v_bfe_u32 v34, v2, 4, 1
    v_bfe_u32 v35, v2, 1, 1
    v_lshl_or_b32 v34, v34, 1, v35
    v_xor_b32 v32, v32, v34
    v_lshl_add_u32 v33, v32, 4, v33
    v_and_b32 v32, 1, v2
    v_lshl_add_u32 v33, v32, 3, v33
    v_add_u32 v124, s13, v33
    v_xor_b32 v125, 64, v124
    v_xor_b32 v126, 32, v124
    v_add_u32 v126, 512, v126
    v_xor_b32 v127, 64, v126""")
    g["a"] = old
    o = sv.l
    for i in range(max(len(wl), len(o))):
        if i < len(wl): a(wl[i])
        if i < len(o): a(o[i])
    RC0, RCS, VC = 32, 36, 44
    sHB, sST, sCO, sHO, sM0, sRD, sWO, sNEED = 16, 17, 18, 19, 20, 21, 22, 23
    a(f"""v_lshrrev_b32 v40, 3, v2
    v_lshlrev_b32 v40, 1, v40
    s_lshl_b32 s10, s7, 6
    s_add_u32 s10, s10, s8""")
    dma_voffsets(VC, "s10", 2, 32768, 40, 41)
    a(f"""s_lshl_b32 s{sHB}, s6, 2
    s_add_u32 s{sHB}, s{sHB}, s3
    s_lshl_b32 s{sHB}, s{sHB}, 17        ; mb*128*1024
    s_mov_b32 s{sST}, s100               ; s0
    s_lshl_b32 s{sWO}, s9, 13
    s_lshl_b32 s10, s8, 12
    s_add_u32 s{sWO}, s{sWO}, s10
    """)
    def cdma(i):
        return f"buffer_load_dwordx4 v{VC+i}, {S(sC)}, s{sCO} offen offset:{1024*i} lds"
    def c03():
        for st in range(4):
            a(f"""s_add_u32 s{sCO}, s{sST}, {st}
            s_and_b32 s{sCO}, s{sCO}, 15
            s_lshl_b32 s{sCO}, s{sCO}, 7
            s_add_u32 m0, s{sWO}, {st*16384}""")
            for i in range(4): a(cdma(i))
    lds_wait("G_all16", vFA, 0, 16, FLG, sleep=0)
    stamp(4)
    scal(4)
    EB = 192
    a(f"""v_mov_b32 v36, 0
    v_mov_b32 v37, 0
    s_cmp_eq_u32 s12, 0
    s_cbranch_scc1 G_lbdone
    s_mov_b32 s14, -1
    s_mov_b32 s15, 0""")
    a.label("G_lb")
    a("""s_lshl_b32 s13, s12, 14
    s_sub_u32 s13, s13, 16384""")
    for i in range(16):
        a(f"""s_bitcmp1_b32 s14, {i}
        s_cbranch_scc0 G_lbs{i}
        buffer_load_dwordx4 {V(EB+4*i,4)}, v{vE}, {S(sE)}, s13 offen sc1""")
        a.label(f"G_lbs{i}")
        if i < 15: a("s_sub_u32 s13, s13, 32768\ns_cbranch_scc1 G_lb1")
    a.label("G_lb1")
    a("""v_mov_b32 v36, 0
    v_mov_b32 v37, 0
    v_mov_b32 v38, 0
    v_mov_b32 v39, 0
    s_mov_b32 s14, 0
    s_sub_u32 s13, s12, 1
    s_waitcnt vmcnt(0)""")
    for i in range(16):
        e = EB + 4 * i
        a(f"v_cmp_ne_u64 vcc, v[{e+2}:{e+3}], v[{vN}:{vN+1}]")
        a(pk(36, WT + 2 * i, 0, e, 36))
        a(pk(38, WT + 2 * i, 1, e, 38, swapx=True, neglo=True))
        a(f"s_cmp_lg_u64 vcc, 0\ns_cselect_b32 s10, {1<<i}, 0\ns_or_b32 s14, s14, s10")
        if i < 15: a("s_sub_u32 s13, s13, 2\ns_cbranch_scc1 G_lb2")
    a.label("G_lb2")
    a(f"""s_cmp_eq_u32 s14, 0
    s_cbranch_scc1 G_lb3
    s_add_u32 s15, s15, 1
    {"s_sleep " + str(OPT['lbsleep']) if OPT['lbsleep'] else ""}
    s_cmp_lt_u32 s15, {OPT['spin']}
    s_cbranch_scc1 G_lb""")
    a.label("G_lb3")
    a(pkop("add", 36, 36, 38))
    a("""v_mov_b32 v38, v36
    v_mov_b32 v39, v37
    v_permlane32_swap_b32 v36, v38
    v_permlane32_swap_b32 v37, v39""")
    a(pkop("add", 36, 36, 38))
    a.label("G_lbdone")
    savecnt(0)
    stamp(5)
    if OPT["cpos"] == 1: c03()
    scal(8)
    ls = []
    for m in range(2):
        pr_, pi_, gr, gi = 104 + 4 * m, 106 + 4 * m, 112 + 4 * m, 114 + 4 * m
        ls.append([pk(gr, 36, 0, pr_, gr), pk(gi, 36, 1, pr_, gi, neg=True), pk(gr, 36, 1, pi_, gr, neg=True), pk(gi, 36, 0, pi_, gi, neg=True)])
    interleave(*ls)
    for j in range(8):
        ls = []
        for m in range(2):
            cur = (U(0, m, j, 128), U(1, m, j, 128))
            prev = 112 + 4 * m if j == 0 else (U(0, m, j - 1, 128), U(1, m, j - 1, 128))
            ls.append(pkcmul(cur, L1, prev, cur, conjL=True))
        interleave(*ls)
    PKB = 192
    for part in range(2):
        for e in range(2):
            for m in range(2):
                q = PKB + 16 * part + 8 * e + 4 * m
                for gq in range(4):
                    a(f"v_cvt_pk_bf16_f32 v{q+gq}, v{U(part,m,2*gq,128)+e}, v{U(part,m,2*gq+1,128)+e}")
                a(f"ds_write_b128 v{120+2*e+m}, {V(q,4)} offset:{part*4096}")
    a("""s_lshl_b32 s10, s12, 18
    s_lshl_b32 s11, s7, 13
    s_add_u32 s10, s10, s11
    s_lshl_b32 s11, s9, 11
    s_add_u32 s10, s10, s11
    s_add_u32 s11, s10, 131072
    s_waitcnt lgkmcnt(0)""")
    TR = 224
    order = [(part, mb, u) for part in range(2) for mb in range(2) for u in range(2)]
    for idx, (part, mb, u) in enumerate(order):
        for q in range(2):
            a(f"ds_read_b64_tr_b16 {V(TR+4*idx+2*q,2)}, v{124+2*q+mb} offset:{part*4096+u*2048}")
    for idx, (part, mb, u) in enumerate(order):
        a(f"s_waitcnt lgkmcnt({14-2*idx})")
        a(f"buffer_store_dwordx4 {V(TR+4*idx,4)}, v{vL16b if part else vL16}, {S(sHF)}, s{10+mb} offen offset:{u*1024} sc1")
    a(f"""v_lshrrev_b32 v34, 1, v{vM}
    v_and_b32 v34, 7, v34
    v_xor_b32 v34, v34, v{vH}
    v_lshlrev_b32 v34, 4, v34
    v_lshl_add_u32 v{RC0}, v{vM}, 7, v34""")
    for k in range(1, 4): a(f"v_xor_b32 v{RC0+k}, {32*k}, v{RC0}")
    for k in range(4): a(f"v_mov_b32 v{RCS+k}, v{RC0+k}")
    a(f"""v_mov_b32 v{vT}, 17
    s_lshl_b32 s10, s12, 8
    s_add_u32 s10, s10, 16384
    s_lshl_b32 s11, s7, 4
    s_lshl_b32 s13, s9, 3
    s_add_u32 s11, s11, s13
    s_add_u32 s11, s11, s10
    v_lshl_add_u32 v19, v{vM}, 3, s10
    s_waitcnt vmcnt(0)
    s_mov_b64 exec, 1
    buffer_store_dwordx2 v[{vN}:{vN+1}], v{vZero}, {S(sFL)}, s11 offen sc1
    s_mov_b64 exec, -1""")
    if OPT["cpos"] != 2: a(f"ds_write_b32 v{vF}, v{vT}")
    stamp(6)
    if OPT["cpos"] == 2: c03()
    for i in range(16):
        g, r = i >> 2, i & 3
        if r % 2 == 0: a(f"s_mov_b32 s13, {(8*g + r)*2048}")
        a(f"buffer_load_dword v{XR+i}, v{vX}, {S(sT0)}, s13 offen offset:{(r&1)*2048}")
    for i in range(32): a(f"v_mov_b32 v{64+i}, 0")
    CF = 192
    def cread(k, rset):
        part, u4 = k >> 2, k & 3
        f = CF + 8 * (k & 3)
        return [f"ds_read_b128 {V(f+4*ct,4)}, v{rset+u4} offset:{part*8192+ct*4096}" for ct in range(2)]
    def csync():
        if OPT["cpos"] == 0: lds_wait("G_f0", vFA, 16, 1000, FLG)
        savecnt(1)
        lds_wait("G_f1", vFA, 0, 17, FLG)
        savecnt(2)
        a(f"v_mov_b32 v{FLG+1}, v{FLG}\nv_mov_b32 v{FLG+2}, v{FLG}\nv_mov_b32 v{FLG+3}, v{FLG}")
        for k in range(2):
            for s in cread(k, RCS): a(s)
    if OPT["cpos"] != 2: csync()
    poll("GH", 40, 19, sFL, vN)
    if OPT["cpos"] == 2: a(f"ds_write_b32 v{vF}, v{vT}")
    savecnt(3)
    stamp(7)
    def hload(par, k):
        return f"buffer_load_dwordx4 {V(128+32*par+4*k,4)}, v{vL16b if k >= 4 else vL16}, {S(sHF)}, s{sHO} offen offset:{(k&3)*1024}{' sc1' if OPT['hsc'] else ''}"
    for st in range(2):
        a(f"""s_add_u32 s10, s{sST}, {st}
        s_and_b32 s10, s10, 15
        s_lshl_b32 s10, s10, 13
        s_add_u32 s{sHO}, s{sHB}, s10""")
        for k in range(8):
            if k < 4: a(f"buffer_load_dword v19, v{vZero}, {S(sDBG)}, 0 offen offset:512")
            a(hload(st, k))
    XD = 96
    a(f"""v_lshlrev_b32 v20, 16, v{vD}
    v_and_b32 v21, 0xffff0000, v{vD}""")
    for i in range(16):
        a(f"""v_lshlrev_b32 v{XD+2*i}, 16, v{XR+i}
        v_and_b32 v{XD+2*i+1}, 0xffff0000, v{XR+i}""")
    for i in range(16):
        scal(16); a(pkop("mul", XD + 2 * i, XD + 2 * i, 20))
    if OPT["cpos"] == 2: csync()
    prio("gp3")
    a(f"""s_mov_b32 s{sNEED}, 17
    s_mov_b32 s{sM0}, {4*16384}
    s_mov_b32 s{sRD}, 16384
    s_add_u32 s{sST}, s{sST}, 2""")
    FK_ = OPT["flagk"]
    vm = []; lg = []; cnt = {}
    for s in range(6):
        for k in range(8):
            if s == 5:
                cnt[("vm", k)] = len(vm) - 1 - vm.index(("H", s, k))
                cnt[("lg", k)] = len(lg) - 1 - lg.index(("R", s, k, 1))
                if k == FK_: cnt["vmC"] = len(vm) - 1 - vm.index(("C", s + 2, 3))
                if k == 0: cnt["lgF"] = len(lg) - 1 - lg.index(("FR", s - 1))
            if k == FK_: lg.append(("FW", s))
            kk = k + 2
            lg += [("R", s + kk // 8, kk % 8, 0), ("R", s + kk // 8, kk % 8, 1)]
            if k == 5: lg.append(("FR", s))
            if k < 4: vm.append(("C", s + 4, k))
            vm.append(("H", s + 2, k))
    a.label("G2_loop")
    slow = []
    for par in range(2):
        cur, nxt = RCS + 4 * par, RCS + 4 * (1 - par)
        for k in range(8):
            v_, l_ = cnt[("vm", k)], cnt[("lg", k)]
            if k == FK_: v_ = min(v_, cnt["vmC"])
            if k == 0: l_ = min(l_, cnt["lgF"])
            a(f"s_waitcnt vmcnt({v_}) lgkmcnt({l_})")
            h = 128 + 32 * par + 4 * k; f = CF + 8 * (k & 3)
            a(f"v_mfma_f32_32x32x16_bf16 v[64:79], {V(h,4)}, {V(f,4)}, v[64:79]")
            if k == 0:
                a(f"""v_min3_u32 v{vT}, v{FLG}, v{FLG+1}, v{FLG+2}
                v_min_u32 v{vT}, v{vT}, v{FLG+3}
                v_cmp_gt_u32 vcc, s{sNEED}, v{vT}
                s_add_u32 s{sNEED}, s{sNEED}, 1
                s_cbranch_vccnz G2_slow{par}""")
                a.label(f"G2_back{par}")
                a(f"""s_and_b32 s10, s{sST}, 15
                s_lshl_b32 s10, s10, 13
                s_add_u32 s{sHO}, s{sHB}, s10
                s_add_u32 s10, s{sST}, 2
                s_and_b32 s10, s10, 15
                s_lshl_b32 s{sCO}, s10, 7
                s_add_u32 m0, s{sWO}, s{sM0}
                s_add_u32 s{sST}, s{sST}, 1""")
            if k == FK_:
                a(f"v_mov_b32 v{vT}, s{sNEED}\nds_write_b32 v{vF}, v{vT}")
            if k == 4:
                for u in range(4): a(f"v_add_u32 v{nxt+u}, s{sRD}, v{RC0+u}")
                a(f"""s_add_u32 s{sRD}, s{sRD}, 16384
                s_cmp_eq_u32 s{sRD}, 98304
                s_cselect_b32 s{sRD}, 0, s{sRD}
                s_add_u32 s{sM0}, s{sM0}, 16384
                s_cmp_eq_u32 s{sM0}, 98304
                s_cselect_b32 s{sM0}, 0, s{sM0}""")
            for s in cread((k + 2) % 8, cur if k < 6 else nxt): a(s)
            if k == 5: a(f"ds_read_b128 {V(FLG,4)}, v{vFA}")
            if k < 4: a(cdma(k))
            a(f"v_mfma_f32_32x32x16_bf16 v[80:95], {V(h,4)}, {V(f+4,4)}, v[80:95]")
            a(hload(par, k))
    a(f"""s_cmp_ge_u32 s{sNEED}, 29
    s_cselect_b32 s{sC+2}, 0, s{sC+2}
    s_cmp_ge_u32 s{sNEED}, 31
    s_cselect_b32 s{sHF+2}, 0, s{sHF+2}
    s_cmp_lt_u32 s{sNEED}, 33
    s_cbranch_scc1 G2_loop""")
    stamp(8)
    a(f"""s_lshl_b32 s10, s6, 7
    s_lshl_b32 s11, s3, 5
    s_add_u32 s10, s10, s11
    v_lshl_add_u32 v32, v{vH}, 2, s10
    v_lshlrev_b32 v32, 13, v32
    s_lshl_b32 s10, s7, 8
    s_add_u32 s10, s10, 4096
    v_lshl_add_u32 v33, v{vM}, 3, s10
    v_add_u32 v32, v32, v33""")
    nt = ["", " nt", " sc1", " sc0 sc1", " sc1 nt"][OPT["outnt"]]
    for i in range(16):
        a(f"""v_add_f32 v{XD+2*i}, v{XD+2*i}, v{64+i}
        v_add_f32 v{XD+2*i+1}, v{XD+2*i+1}, v{80+i}
        s_mov_b32 s10, {(8*(i>>2) + (i&3))*8192}
        buffer_store_dwordx2 v[{XD+2*i}:{XD+2*i+1}], v32, {S(sT2)}, s10 offen{nt}""")
    a("s_waitcnt vmcnt(0) lgkmcnt(0)")
    stamp(9)
    stamp_out()
    a("s_endpgm")
    for par in range(2):
        a.label(f"G2_slow{par}")
        a(f"s_sub_u32 s10, s{sNEED}, 1")
        lds_wait(f"G2_sl{par}", vFA, 0, "s10", FLG, sleep=0)
        a(f"s_branch G2_back{par}")

def role_L():
    XST[:] = [42, 44]
    sX, sBr, sBi, sSK, sFL, sDBG, sC = 52, 56, 60, 68, 72, 76, 80
    sKVT, sZT, sQ, sOUT = 52, 56, 60, 64
    VA, VB, VC = 4, 8, 12
    vK, vZero, vN = 16, 19, 0
    ISS, FKO, FZO = 40, 44, 48
    LM = 1
    prio("lp1")
    NL, D = OPT["nl"], OPT["dep"]
    NI = 32 // NL
    PW = 0 if NL == 4 else 3
    a(f"""s_sub_u32 s8, s3, 4
    s_lshl_b32 s10, s6, 7
    s_lshr_b32 s11, s8, 1
    s_and_b32 s9, s8, 1""")
    if NL == 4: a("s_lshl_b32 s12, s11, 6\ns_add_u32 s10, s10, s12\ns_lshl_b32 s12, s9, 3\ns_add_u32 s10, s10, s12")
    if NL == 2: a("s_lshl_b32 s12, s9, 6\ns_add_u32 s10, s10, s12")
    a("""v_and_b32 v24, 32, v2
    v_bfe_u32 v25, v2, 3, 1
    v_lshl_add_u32 v24, v25, 4, v24
    v_bfe_u32 v25, v2, 4, 1
    v_add_u32 v24, v24, v25""")
    dma_voffsets(VA, "s10", 1, 4096, 24, 25)
    a("""s_lshl_b32 s10, s7, 6
    v_lshrrev_b32 v24, 3, v2""")
    if NL == 4: a("s_lshl_b32 s12, s11, 5\ns_add_u32 s10, s10, s12")
    if NL == 2: a("s_lshl_b32 s12, s9, 5\ns_add_u32 s10, s10, s12")
    dma_voffsets(VB, "s10", 1, 16384, 24, 25)
    a(f"""s_lshl_b32 s13, s101, 7
    s_lshl_b32 s101, s100, 7
    s_lshl_b32 s14, s8, {12 if NL == 4 else 13}
    v_mov_b32 v{vZero}, 0
    s_lshl_b32 s10, s3, 2
    s_add_u32 s10, s10, {LDSF}
    v_mov_b32 v22, s10
    v_mov_b32 v21, {LDSF}
    s_cmp_ge_u32 s8, {NL}
    s_cselect_b32 s10, 1000, 0
    v_mov_b32 v25, s10
    ds_write_b32 v22, v25
    ds_write_b32 v22, v{vZero} offset:24      ; words 40..52
    s_waitcnt lgkmcnt(0)
    s_barrier""")
    srd(sX, "x", 4 << 20)
    if NL == 4:
        a("s_cmp_eq_u32 s9, 1")
        srd_sel(sBr, "Bre", "Bim", 2 << 20)
    else:
        srd(sBr, "Bre", 2 << 20); srd(sBi, "Bim", 2 << 20)
    if OPT["g1x"] & 16: a(f"s_mov_b32 s{sX+2}, 0\ns_mov_b32 s{sBr+2}, 0\ns_mov_b32 s{sBi+2}, 0")
    def pace():
        n = OPT["pace"]
        if not n: return
        if n >= 100: a(f"s_sleep {n-100}")
        else: a("s_nop 15\n" * (n // 16) + (f"s_nop {n % 16 - 1}" if n % 16 else ""))
    def stage(first=False, D=D):
        l = []
        for g in range(4 // NL):
            ro = (64 * (g >> 1) + 8 * (g & 1)) * 2048
            for i in range(4):
                pre = []
                if i == 0:
                    pre.append(f"s_add_u32 m0, s14, {4096*g}")
                    if ro: pre.append(f"s_add_u32 s12, s13, {ro}")
                l.append((pre, f"buffer_load_dwordx4 v{VA+i}, {S(sX)}, {'s12' if ro else 's13'} offen offset:{1024*i} lds"))
            for i in range(4):
                pre = []
                if i == 0:
                    pre.append(f"s_add_u32 m0, s14, {16384+4096*g}")
                    if g >> 1: pre.append(f"s_add_u32 s12, s13, {32*2048}")
                l.append((pre, f"buffer_load_dwordx4 v{VB+i}, {S(sBi if g & 1 else sBr)}, {'s12' if g >> 1 else 's13'} offen offset:{1024*i} lds"))
        for i, (pre, ld) in enumerate(l):
            for x in pre: a(x)
            if (not first or i > D) and (i % OPT["wev"] == 0 or i == D) and D < 60: a(f"s_waitcnt vmcnt({D})")
            if i == D and not first: a("ds_write_b32 v22, v25")
            a(ld)
            if i == NI - 1 - (8 // NL) and not first: a("ds_read_b128 v[60:63], v21")
            if not first and i < NI - 1: pace()
        a("""s_add_u32 s13, s13, 128
        s_and_b32 s13, s13, 2047
        s_add_u32 s14, s14, 32768
        s_and_b32 s14, s14, 131071""")
        if D >= NI and not first: a(f"s_waitcnt vmcnt({NI})\nds_write_b32 v22, v25")
    stamp(0)
    if NL < 4: a(f"s_cmp_ge_u32 s8, {NL}\ns_cbranch_scc1 L_ns0")
    stage(True, OPT["dep0"] if OPT["nd"] else D)
    a.label("L_ns0")
    srd(sFL, "ws", 24576, WS_FL); srd(sDBG, "dbg", 256)
    a(f"""s_lshl_b32 s100, s4, 7
    s_lshl_b32 s10, s5, 2
    s_add_u32 s100, s100, s10
    s_add_u32 s100, s100, s8
    s_lshl_b32 s10, s100, 12
    s_load_dword s30, s[{P['ssmk']}:{P['ssmk']+1}], s10
    s_lshr_b32 s10, s100, 1
    s_lshl_b32 s10, s10, 2
    s_load_dword s31, s[{P['ssmD']}:{P['ssmD']+1}], s10
    s_mov_b32 s37, s101
    s_mul_i32 s101, s8, {A2_WB}
    s_add_u32 s101, s101, {A2_BASE}""")
    if OPT["cpos"] == 0:
        a(f"""s_lshl_b32 s10, s7, 6
        s_add_u32 s10, s10, s11
        v_lshrrev_b32 v24, 3, v2
        v_lshlrev_b32 v24, 1, v24""")
        dma_voffsets(VC, "s10", 2, 32768, 24, 25)
        a("s_cmp_eq_u32 s9, 1")
        srd_sel(sC, "Cre", "Cim", 2 << 20)
    srd(sSK, "ssmk", 4 << 20); srd(sOUT, "out", 16 << 20)
    vT0, vCH0 = 23, 24
    vL16, vSK0, vSK1, vZF, vSKW = 26, 27, 17, 18, 35
    AAD, BAD, DF = 28, 32, 36
    ZR = 56
    so = ["0", "s32", "s33", "s34"]
    a(f"""s_movk_i32 s32, 4096
    s_movk_i32 s33, 8192
    s_movk_i32 s34, 12288
    s_lshl_b32 s10, s5, 6
    v_and_b32 v{vT0}, 56, v2
    v_add_u32 v{vT0}, s10, v{vT0}
    s_lshl_b32 s10, s4, 7
    s_lshl_b32 s12, s8, 5
    s_add_u32 s35, s10, s12
    v_and_b32 v25, 7, v2
    v_lshl_add_u32 v{vCH0}, v25, 2, s35
    v_lshlrev_b32 v25, 1, v{vCH0}
    v_lshl_add_u32 v{vK}, v{vT0}, 11, v25
    v_lshlrev_b32 v{vL16}, 4, v2
    s_lshl_b32 s36, s100, 12           ; c2*4096
    v_add_u32 v{vSK0}, s36, v{vL16}
    v_add_u32 v{vSK1}, 2, v{vSK0}
    s_add_u32 s10, s101, 32
    v_add_u32 v{vSKW}, s10, v{vL16}
    v_add_u32 v60, {A2_KV+4096}, v{vL16}
    v_and_b32 v61, 16, v{vL16}
    v_and_b32 v62, 32, v{vL16}
    v_mul_u32_u24 v62, {A2_W1//32}, v62
    v_add_u32 v61, v61, v62
    v_cmp_gt_u32 vcc, 32, v2
    v_cndmask_b32 v60, v61, v60, vcc
    v_add_u32 v{vZF}, s101, v60
    v_mov_b32 v{ZR}, 0
    v_mov_b32 v{ZR+1}, 0
    v_mov_b32 v{ZR+2}, 0
    s_waitcnt lgkmcnt(0)
    s_lshl_b32 s30, s30, 16
    v_mov_b32 v61, s30
    v_and_b32 v62, 35, v2
    v_cmp_eq_u32 vcc, 35, v62
    v_cndmask_b32 v{ZR+3}, 0, v61, vcc
    s_lshl_b32 s10, s4, 2
    s_lshr_b32 s12, s5, 3
    s_add_u32 s10, s10, s12
    s_lshl_b32 s10, s10, 8
    v_and_b32 v60, 31, v2
    v_lshl_add_u32 v20, v60, 3, s10
    s_lshl_b32 s10, s4, 10
    s_add_u32 s10, s10, 8192
    v_add_u32 v3, s10, v{vL16}
    v_and_b32 v64, 15, v2              ; i / n
    v_lshrrev_b32 v65, 4, v2           ; kg
    v_lshlrev_b32 v60, 1, v64
    v_lshlrev_b32 v61, 4, v65
    v_sub_u32 v60, v60, v61
    v_and_b32 v62, 1, v64
    v_mov_b32 v63, {A2_W1+48}
    v_cmp_eq_u32 vcc, 1, v62
    v_cndmask_b32 v63, v63, 50, vcc
    v_add3_u32 v{AAD}, v60, v63, s101
    v_add_u32 v{AAD+1}, 1024, v{AAD}
    v_add_u32 v{AAD+2}, 2048, v{AAD}
    v_add_u32 v{AAD+3}, 3072, v{AAD}
    v_lshl_add_u32 v60, v64, 5, v61
    s_add_u32 s10, s101, {A2_KV+528}
    v_sub_u32 v{BAD}, s10, v60
    s_add_u32 s10, s101, {A2_KV}
    v_add_u32 v33, s10, v{vL16}
    ; D fragment: kappa' = 8(3-kg)+e == 15-i
    s_bitcmp1_b32 s100, 0
    s_cselect_b32 s10, 16, 0
    s_lshr_b32 s31, s31, s10
    s_and_b32 s31, s31, 0xffff
    v_lshlrev_b32 v60, 3, v65
    v_sub_u32 v60, v60, v64
    v_add_u32 v60, -9, v60             ; e = 15 - i - 24 + 8kg
    v_and_b32 v61, 1, v60
    v_lshlrev_b32 v61, 4, v61
    v_lshlrev_b32 v61, v61, s31
    v_ashrrev_i32 v60, 1, v60""")
    for d in range(4):
        a(f"v_cmp_eq_u32 vcc, {d}, v60\nv_cndmask_b32 v{DF+d}, 0, v61, vcc")
    a(f"""v_and_b32 v60, 1, v65
    v_lshlrev_b32 v60, 9, v60
    v_lshl_add_u32 v60, v64, 5, v60
    v_lshrrev_b32 v61, 1, v65
    v_lshl_add_u32 v34, v61, 4, v60""")
    SK = 64
    nt = " nt" if OPT["sknt"] else ""
    def skload():
        if OPT["noA"]: return
        for i in range(4): a(f"buffer_load_dwordx4 {V(SK+4*i,4)}, v{vSK0}, {S(sSK)}, 0 offen offset:{1024*i}{nt}")
        for i in range(4): a(f"buffer_load_dwordx4 {V(SK+16+4*i,4)}, v{vSK1}, {S(sSK)}, 0 offen offset:{1024*i}{nt}")
    def trace(o):
        if OPT["ltr"]:
            a(f"""s_memrealtime s[94:95]
            s_memtime s[96:97]
            s_waitcnt lgkmcnt(0)
            s_add_u32 m0, s29, {o}
            v_writelane_b32 v250, s94, m0
            v_writelane_b32 v251, s96, m0""")
    if NL < 4: a(f"s_cmp_ge_u32 s8, {NL}\ns_cbranch_scc1 L_idle")
    a("s_mov_b32 s29, 1\nv_mov_b32 v60, 0")
    a.label("L_loop")
    a(f"""s_sub_i32 s28, s29, 3
    s_max_i32 s28, s28, 0
    s_waitcnt lgkmcnt(0)
    v_min3_u32 v60, v60, v61, v62
    v_min_u32 v60, v60, v63
    v_mov_b32 v25, s29
    v_cmp_gt_u32 vcc, s28, v60
    s_cbranch_vccz L_free""")
    lds_wait("L_slot", 21, 0, "s28", 60)
    a.label("L_free")
    if NL == 4:
        a(f"""s_lshl_b32 s10, s8, 4
        s_add_u32 s10, s10, s29
        s_cmp_eq_u32 s10, 2
        s_cbranch_scc0 L_nn1
        buffer_load_dwordx2 v[{vN}:{vN+1}], v{vZero}, {S(sDBG)}, 0 offen sc1""")
        a.label("L_nn1")
        a(f"""s_cmp_eq_u32 s10, 3
        s_cbranch_scc0 L_nn2
        s_waitcnt vmcnt(8)""")
        nonce_fix("L", vN, vZero, sDBG, cnt="s12")
        a(f"ds_write_b64 v21, v[{vN}:{vN+1}] offset:32")
        a.label("L_nn2")
        a(f"""s_cmp_eq_u32 s10, {OPT['fkw']+1}
        s_cbranch_scc0 L_nf
        buffer_load_dwordx2 v[66:67], v20, {S(sFL)}, 0 offen sc1""")
        a.label("L_nf")
    if OPT["nd"]:
        a(f"s_cmp_ge_u32 s29, {OPT['nd']}\ns_cbranch_scc1 L_sh")
        stage(False, OPT["dep0"])
        a("s_add_u32 s29, s29, 1\ns_branch L_loop")
        a.label("L_sh")
    stage()
    a(f"""s_add_u32 s29, s29, 1
    s_cmp_lt_u32 s29, 16
    s_cbranch_scc1 L_loop
    ds_read_b64 v[{vN}:{vN+1}], v21 offset:32
    v_mov_b32 v25, 16""")
    if NL == 4:
        a(f"""s_cmp_eq_u32 s8, 0
        s_cbranch_scc0 L_nf2
        s_waitcnt vmcnt(8)
        v_cmp_ne_u64 vcc, v[66:67], v[{vN}:{vN+1}]
        s_mov_b32 s12, 0
        s_cbranch_vccnz L_nf3
        ds_write_b32 v21, v25 offset:{FKO}""")
        a.label("L_nf2")
        a("s_mov_b32 s12, 1")
        a.label("L_nf3")
        skload()
        a(f"""s_waitcnt vmcnt({0 if OPT["noA"] else 8})
        ds_write_b32 v22, v25
        s_mov_b32 s15, 0
        s_cmp_eq_u32 s12, 1
        s_cbranch_scc1 L_nf4""")
        poll("LK", 60, 20, sFL, vN)
        a(f"ds_write_b32 v21, v25 offset:{FKO}\ns_add_u32 s15, s15, 1")
        a.label("L_nf4")
        savecnt(0)
    else:
        a(f"""s_waitcnt vmcnt(0)
        ds_write_b32 v22, v25""")
        skload()
        a("s_branch L_t2")
        a.label("L_idle")
        a(f"""v_mov_b32 v25, 16
        s_cmp_eq_u32 s8, 3
        s_cbranch_scc0 L_id2""")
        lds_wait("L_i1", 21, 16, 1, 60, sleep=2)
        a(f"""buffer_load_dwordx2 v[{vN}:{vN+1}], v{vZero}, {S(sDBG)}, 0 offen sc1
        s_waitcnt vmcnt(0)""")
        nonce_fix("L", vN, vZero, sDBG, cnt="s12")
        a(f"ds_write_b64 v21, v[{vN}:{vN+1}] offset:32\nds_write_b32 v21, v25 offset:{ISS}")
        lds_wait("L_i2", 21, 16, OPT["fkw"], 60, sleep=4)
        poll("LK", 60, 20, sFL, vN)
        savecnt(0)
        a(f"ds_write_b32 v21, v25 offset:{FKO}")
        a.label("L_id2")
        lds_wait("L_i3", 21, 16, 16, 60, sleep=4)
        a(f"ds_read_b64 v[{vN}:{vN+1}], v21 offset:32")
        skload()
    a.label("L_t2")
    stamp(1)
    srd(sKVT, "ws", 4 << 20, WS_KVT); srd(sZT, "ws", 4 << 20, WS_ZT); srd(sQ, "q", 0 if OPT["noq"] else 4 << 20)
    lds_wait1("L_fk", 21, FKO, 1, 60)
    stamp(2)
    KV = 40
    if not OPT["noA"]:
        for i in range(4): a(f"buffer_load_dwordx4 {V(KV+4*i,4)}, v{vL16}, {S(sKVT)}, s36 offen offset:{1024*i} sc1")
    nC = 0
    if OPT["cpos"] == 0:
        nC = 16
        a(f"""s_mov_b32 s13, s37
        s_lshl_b32 s14, s9, 13
        s_lshl_b32 s10, s11, 12
        s_add_u32 s14, s14, s10""")
        lds_wait("L_c1", 21, 0, 14, 60)
        for st in range(4):
            a(f"s_add_u32 m0, s14, {16384*st}")
            for i in range(4): a(f"buffer_load_dwordx4 v{VC+i}, {S(sC)}, s13 offen offset:{1024*i} lds")
            a("s_add_u32 s13, s13, 128\ns_and_b32 s13, s13, 2047")
    lds_wait("L_c2", 21, 0, 16, 60)
    stamp(3)
    prio("lp2")
    if OPT["noA"]:
        a("s_waitcnt vmcnt(0)\nv_mov_b32 v61, 1000\nds_write_b32 v22, v61\ns_waitcnt lgkmcnt(0)")
        if OPT["ltr"]:
            srd(52, "ws", 1 << 20, WS_ST + (1 << 20))
            a("""s_lshl_b32 s10, s2, 2
            s_add_u32 s10, s10, s8
            s_lshl_b32 s10, s10, 9
            v_lshlrev_b32 v60, 3, v2
            buffer_store_dwordx2 v[250:251], v60, s[52:55], s10 offen""")
        for i in range(4, 10): stamp(i)
        stamp_out()
        a("s_endpgm")
    a(f"ds_write_b128 v{vZF}, {V(ZR,4)}")
    for i in range(8):
        a(f"s_waitcnt vmcnt({nC+11-i})\nds_write_b128 v{vSKW}, {V(SK+4*i,4)} offset:{(i>>2)*A2_W1+(i&3)*1024}")
    ACC, S0, S1 = 96, 128, 192
    def areads(s, rl):
        l = []
        for q in range(8):
            f = s + 4 * q; o = 128 * (q & 1) + 16 * rl
            l += [f"ds_read2_b32 {V(f,2)}, v{AAD+(q>>1)} offset0:{o} offset1:{o+1}",
                  f"ds_read2_b32 {V(f+2,2)}, v{AAD+(q>>1)} offset0:{o+2} offset1:{o+3}"]
        return l
    def breads(s, rl):
        return [f"ds_read_b128 {V(s+32+4*q,4)}, v{BAD} offset:{64*rl+512*(7-q)}" for q in range(8)]
    for s in areads(S0, 0): a(s)
    for i in range(4):
        a(f"s_waitcnt vmcnt({nC+3-i})\nds_write_b128 v33, {V(KV+4*i,4)} offset:{1024*i}")
    for s in breads(S0, 0): a(s)
    QR = 80
    def qload():
        nt = " nt" if OPT["qnt"] else ""
        for r in range(8):
            a(f"buffer_load_dwordx2 {V(QR+2*r,2)}, v{vK}, {S(sQ)}, {so[r>>1]} offen offset:{(r&1)*2048}{nt}")
    prio("lp3")
    a("s_mov_b32 s15, 0\ns_waitcnt lgkmcnt(0)")
    if OPT["qpos"] == 1: qload()
    stamp(4)
    stopA(2, 5)
    for T in range(8):
        a(f"v_mfma_f32_16x16x32_bf16 {V(ACC+4*T,4)}, {V(DF,4)}, {V(S0+32+4*T,4)}, 0")
    a.label("L_conv")
    for half in range(2):
        cur, nxt = (S0, S1) if half == 0 else (S1, S0)
        ar, br = areads(nxt, half + 1), breads(nxt, half + 1)
        rd = []
        for q in range(8): rd += [ar[2 * q], ar[2 * q + 1], br[q]]
        n = 0
        for q in range(8):
            for u in range(8 - q):
                c = ACC + 4 * (q + u)
                a(f"v_mfma_f32_16x16x32_bf16 {V(c,4)}, {V(cur+4*q,4)}, {V(cur+32+4*u,4)}, {V(c,4)}")
                if n < 24: a(rd[n])
                if half == 1 and 26 <= n < 31: a(f"v_add_u32 v{AAD+n-26}, 128, v{AAD+n-26}")
                n += 1
        a("s_waitcnt lgkmcnt(0)")
    if OPT["cpos"] == 0:
        a("""s_cmp_eq_u32 s15, 1
        s_cbranch_scc0 L_cc
        v_mov_b32 v61, 1000
        s_waitcnt vmcnt(0)
        ds_write_b32 v22, v61""")
        a.label("L_cc")
    a("""s_add_u32 s15, s15, 1
    s_cmp_lt_u32 s15, 4
    s_cbranch_scc1 L_conv""")
    stamp(5)
    stopA(3, 6)
    prio("lp4")
    for tp in range(4):
        q = 64 + 4 * tp
        for o in range(2):
            c = ACC + 4 * (2 * tp + o)
            a(f"v_cvt_pk_bf16_f32 v{q+2*o}, v{c}, v{c+1}\nv_cvt_pk_bf16_f32 v{q+2*o+1}, v{c+2}, v{c+3}")
    for tp in range(4):
        q = 64 + 4 * tp
        a(f"""v_permlane16_swap_b32 v{q}, v{q+2}
        v_permlane16_swap_b32 v{q+1}, v{q+3}
        buffer_store_dwordx4 {V(q,4)}, v34, {S(sZT)}, s36 offen offset:{1024*tp} sc1""")
    QU = 128
    a(f"""s_lshl_b32 s12, s100, 3
    s_add_u32 s12, s12, 8192
    v_lshlrev_b32 v28, 1, v{vT0}
    v_lshl_add_u32 v28, v{vCH0}, 12, v28
    v_lshlrev_b32 v29, 2, v{vCH0}
    v_lshl_add_u32 v29, v{vT0}, 13, v29       ; out address
    s_waitcnt vmcnt(0)
    s_mov_b64 exec, 1
    buffer_store_dwordx2 v[{vN}:{vN+1}], v{vZero}, {S(sFL)}, s12 offen sc1
    s_mov_b64 exec, -1""")
    stamp(6)
    stopA(4, 7)
    if OPT["qpos"] == 2: qload()
    if OPT["zw"]: lds_wait("L_zw", 21, 0, OPT["zw"], 60, sleep=4)
    if OPT["qpos"] == 3: qload()
    a("""s_cmp_eq_u32 s8, 0
    s_cbranch_scc0 L_z1
    s_mov_b32 s15, 0""")
    a.label("LZ_poll")
    a(f"""buffer_load_dwordx4 v[60:63], v3, {S(sFL)}, 0 offen sc1
    s_waitcnt vmcnt(0)
    v_cmp_ne_u64 vcc, v[60:61], v[{vN}:{vN+1}]
    v_cmp_ne_u64 s[10:11], v[62:63], v[{vN}:{vN+1}]
    s_or_b64 vcc, vcc, s[10:11]
    s_cbranch_scc0 LZ_ok
    {"s_sleep " + str(OPT['zps']) if OPT['zps'] else ""}
    s_add_u32 s15, s15, 1
    s_cmp_lt_u32 s15, {OPT['spin']}
    s_cbranch_scc1 LZ_poll""")
    a.label("LZ_ok")
    savecnt(1)
    a(f"ds_write_b32 v21, v25 offset:{FZO}")
    a.label("L_z1")
    a("s_waitcnt vmcnt(0)")
    for r in range(8): unpack(QU + 4 * r, QR + 2 * r)
    lds_wait1("L_fz", 21, FZO, 1, 60)
    stamp(7)
    for c in range(4): a(f"buffer_load_dwordx4 {V(64+4*c,4)}, v28, {S(sZT)}, {so[c]} offen sc1")
    ZU = 160
    a("s_waitcnt vmcnt(0)")
    stamp(8)
    stopA(5, 9)
    if OPT["ow"]: lds_wait("L_ow", 21, 0, OPT["ow"], 60, sleep=4)
    nt = ["", " nt", " sc1", " sc0 sc1", " sc1 nt"][OPT["outnt"]]
    for r in range(8):
        for c in range(4):
            src = 64 + 4 * c + (r >> 1)
            a(f"v_and_b32 v{ZU+4*r+c}, 0xffff0000, v{src}" if r & 1 else f"v_lshlrev_b32 v{ZU+4*r+c}, 16, v{src}")
        for p in range(2):
            d = ZU + 4 * r + 2 * p; qq = QU + 4 * r + 2 * p
            scal(32); a(pkop("mul", d, d, qq))
        a(f"""s_mov_b32 s10, {r*8192}
        buffer_store_dwordx4 {V(ZU+4*r,4)}, v29, {S(sOUT)}, s10 offen{nt}""")
    a("s_waitcnt vmcnt(0)")
    stamp(9)
    stamp_out()
    a("s_endpgm")

def main():
    kname = "y_kernel" if OPT["list"] else NAME + "_kernel"
    a.l += [f".globl {kname}", ".p2align 8", f".type {kname},@function"]
    a.label(kname)
    a("""s_cmp_ge_u32 s2, 256
    s_cbranch_scc1 Y_done
    s_load_dwordx16 s[16:31], s[0:1], 0
    s_load_dwordx16 s[32:47], s[0:1], 64
    s_load_dwordx4 s[48:51], s[0:1], 128
    v_lshrrev_b32 v1, 6, v0
    v_and_b32 v2, 63, v0
    s_and_b32 s4, s2, 7
    v_readfirstlane_b32 s3, v1
    s_lshr_b32 s5, s2, 3
    s_and_b32 s6, s4, 3
    s_lshl_b32 s6, s6, 2
    s_and_b32 s7, s5, 3
    s_add_u32 s6, s6, s7            ; mt
    s_and_b32 s7, s4, 4
    s_lshl_b32 s7, s7, 1
    s_lshr_b32 s8, s5, 2
    s_add_u32 s7, s7, s8            ; nt""")
    def k0calc(dst, mode):
        if mode == 0:
            a(f"""s_and_b32 {dst}, s4, 3
            s_lshl_b32 {dst}, {dst}, 2
            s_and_b32 s9, s4, 4
            s_lshl_b32 s9, s9, 1
            s_add_u32 {dst}, {dst}, s9
            s_and_b32 {dst}, {dst}, 15""")
        elif mode == 1:
            a(f"""s_lshl_b32 {dst}, s8, 1
            s_and_b32 s9, s5, 3
            s_lshl_b32 s9, s9, 2
            s_add_u32 {dst}, {dst}, s9
            s_and_b32 s9, s4, 3
            s_add_u32 {dst}, {dst}, s9
            s_lshr_b32 s9, s4, 2
            s_add_u32 {dst}, {dst}, s9
            s_and_b32 {dst}, {dst}, 15""")
        elif mode == 2:
            a(f"""s_and_b32 s9, s5, 3
            s_add_u32 {dst}, s8, s9
            s_lshl_b32 {dst}, {dst}, 2
            s_and_b32 s9, s4, 3
            s_add_u32 {dst}, {dst}, s9
            s_lshr_b32 s9, s4, 2
            s_lshl_b32 s9, s9, 1
            s_add_u32 {dst}, {dst}, s9
            s_and_b32 {dst}, {dst}, 15""")
        elif mode == 3:
            a(f"""s_and_b32 s9, s5, 3
            s_add_u32 {dst}, s8, s9
            s_lshl_b32 {dst}, {dst}, 2
            s_and_b32 s9, s4, 3
            s_add_u32 {dst}, {dst}, s9
            s_lshr_b32 s9, s4, 2
            s_lshl_b32 s9, s9, 1
            s_add_u32 {dst}, {dst}, s9
            s_lshl_b32 {dst}, {dst}, 1
            s_and_b32 {dst}, {dst}, 15""")
    k0calc("s101", OPT["kst"]); k0calc("s100", OPT["kst2"])
    a("""s_cmp_lt_u32 s3, 4
    s_cbranch_scc1 Y_G""")
    role_L()
    a.label("Y_G")
    role_G()
    a.label("Y_done")
    a("s_endpgm")
    body = a.finish()
    out = []
    for ln in open("/code/" + NAME + ".s.ref").read().split("\n"):
        if ln.startswith("; @launch") or ln.startswith(".amdgcn"): break
        if ln.startswith("; Override") or ln.startswith("; grid="): continue
        out.append(ln)
    if OPT["list"]: out.append(f"; @launch kernel={kname} grid=(256,1,1) block=(512,1,1) lds=163840")
    else: out.append("; @launch grid=(256,1,1) block=(512,1,1) lds=163840")
    out += ['.amdgcn_target "amdgcn-amd-amdhsa--gfx950"', ".text"] + body
    out.append(f""".section .rodata,"a"
.p2align 6
.amdhsa_kernel {kname}
  .amdhsa_next_free_vgpr 256
  .amdhsa_next_free_sgpr 102
  .amdhsa_accum_offset 256
  .amdhsa_group_segment_fixed_size 0
  .amdhsa_kernarg_size 144
  .amdhsa_user_sgpr_count 2
  .amdhsa_user_sgpr_kernarg_segment_ptr 1
  .amdhsa_system_sgpr_workgroup_id_x 1
.end_amdhsa_kernel""")
    open(OPT["out"], "w").write("\n".join(out) + "\n")
main()
```
